```python
import torch

def _softmax(x, axis=-1):
    return torch.softmax(x, dim=axis)
def _gelu(x):
    return torch.nn.functional.gelu(x, approximate="tanh")
def _silu(x):
    return torch.nn.functional.silu(x)
def _sigmoid(x):
    return torch.sigmoid(x)
def _layernorm(x, axis=-1, eps=1e-5):
    m = x.mean(dim=axis, keepdim=True)
    v = x.var(dim=axis, keepdim=True, unbiased=False)
    return (x - m) / torch.sqrt(v + eps)
def _scatter_add(tgt, idx, src, axis=0):
    return tgt.clone().index_add_(axis, idx, src)
def _segment_sum(src, seg, n):
    out = torch.zeros((n,) + src.shape[1:], dtype=src.dtype)
    return out.index_add_(0, seg, src)
def _pad(x, pw):
    flat = tuple(v for pair in reversed(pw) for v in pair)
    return torch.nn.functional.pad(x, flat)

kernel_name = 'interleave_layers__linear_attn_block__swiglu_ffn__prompt'

def setup_inputs():

    _w = (lambda a: (lambda t: t.to(torch.bfloat16) if t.is_floating_point() else t)(torch.as_tensor(a)))
    def _A_setup():
        B, S, D = 1, 2048, 1024
        return {
            "x": _w((lambda *s: torch.randn(*s, dtype=torch.bfloat16) * 0.05)(B, S, D)),
            "wqkv": _w((lambda *s: torch.randn(*s, dtype=torch.bfloat16) * 0.05)(D, 3 * D)),
            "wo": _w((lambda *s: torch.randn(*s, dtype=torch.bfloat16) * 0.05)(D, D)),
        }
    _A_in = _A_setup()

    def _B_setup():
        B, S, D, F = 1, 2048, 1024, 3584
        return {
            "x": _w((lambda *s: torch.randn(*s, dtype=torch.bfloat16) * 0.05)(B, S, D)),
            "w_gate": _w((lambda *s: torch.randn(*s, dtype=torch.bfloat16) * 0.05)(D, F)),
            "w_up": _w((lambda *s: torch.randn(*s, dtype=torch.bfloat16) * 0.05)(D, F)),
            "w_down": _w((lambda *s: torch.randn(*s, dtype=torch.bfloat16) * 0.05)(F, D)),
        }
    _B_in = _B_setup()

    return {
        "A_x": _A_in["x"],
        "A_wqkv": _A_in["wqkv"],
        "A_wo": _A_in["wo"],
        "B_x": _B_in["x"],
        "B_w_gate": _B_in["w_gate"],
        "B_w_up": _B_in["w_up"],
        "B_w_down": _B_in["w_down"],
    }

def reference(A_x, A_wqkv, A_wo, B_x, B_w_gate, B_w_up, B_w_down):
    def _A_ref(x, wqkv, wo):
        B, S, D = x.shape
        H = 32; Dh = D // H
        qkv = (lambda x, *d: x.permute(*d))((x @ wqkv).reshape(B, S, 3, H, Dh), 2, 0, 3, 1, 4)
        q, k, v = qkv[0], qkv[1], qkv[2]
        phi = lambda t: torch.where(t > 0, t + 1, torch.exp(t)) + 1e-6
        pq, pk = phi(q), phi(k)
        kv = torch.einsum("bhsd,bhse->bhde", pk, v)
        z = torch.einsum("bhsd->bhd", pk)
        num = torch.einsum("bhqd,bhde->bhqe", pq, kv)
        den = torch.einsum("bhqd,bhd->bhq", pq, z)[..., None] + 1e-6
        o = num / den
        return (lambda x, *d: x.permute(*d))(o, 0, 2, 1, 3).reshape(B, S, D) @ wo

    def _B_ref(x, w_gate, w_up, w_down):
        g = _silu(x @ w_gate)
        u = x @ w_up
        return (g * u) @ w_down

    x = A_x
    x = x + _A_ref(_layernorm(x, axis=-1), A_wqkv, A_wo)
    x = x + _B_ref(_layernorm(x, axis=-1), B_w_gate, B_w_up, B_w_down)
    x = x + _A_ref(_layernorm(x, axis=-1), A_wqkv, A_wo)
    x = x + _B_ref(_layernorm(x, axis=-1), B_w_gate, B_w_up, B_w_down)
    return x
```

```python
import re

TRANS = ("v_exp_f32", "v_log_f32", "v_rcp_f32", "v_rsq_f32", "v_sqrt_f32", "v_sin_f32", "v_cos_f32")
_REG = re.compile(r"^(-|abs\()?([vas])(?:(\d+)|\[(\d+):(\d+)\])\)?$")


def regs_of(op):
    op = op.strip()
    if op == "vcc":
        return {"vcc"}
    if op == "exec":
        return {"exec"}
    if op == "m0":
        return {"m0"}
    m = _REG.match(op)
    if not m:
        return set()
    k = m.group(2)
    if m.group(3) is not None:
        return {k + m.group(3)}
    return {k + str(i) for i in range(int(m.group(4)), int(m.group(5)) + 1)}


def mfma_passes(mn):
    if "32x32x16" in mn or "32x32x8" in mn:
        return 8
    if "16x16x32" in mn or "16x16x16" in mn:
        return 4
    if "4x4x4" in mn:
        return 2
    raise ValueError(mn)


class Ins:
    def __init__(self, text):
        self.text = text
        t = text.split(";")[0].strip()
        self.label = t.endswith(":")
        self.directive = t.startswith(".") and not self.label
        self.empty = t == ""
        self.kind = None
        self.wr = set()
        self.rd = set()
        self.srcc = set()
        self.ab = set()
        self.states = 0
        self.mn = ""
        if self.label or self.directive or self.empty:
            return
        parts = t.split(None, 1)
        mn = parts[0]
        self.mn = mn
        rest = parts[1] if len(parts) > 1 else ""
        ops = [o.strip() for o in rest.split(",")] if rest else []
        flat = []
        mods = []
        for o in ops:
            w = o.split()
            if not w:
                continue
            flat.append(w[0])
            mods += w[1:]
        self.mods = mods
        self.states = 1
        R = [regs_of(o) for o in flat]
        allr = set().union(*R) if R else set()
        if mn == "s_nop":
            self.kind = "nop"
            self.states = int(flat[0], 0) + 1
        elif mn.startswith("v_mfma"):
            self.kind = "mfma"
            self.wr = R[0]
            self.ab = R[1] | R[2]
            self.srcc = R[3]
            self.rd = self.ab | self.srcc
            self.passes = mfma_passes(mn)
        elif mn.startswith("v_"):
            self.kind = "valu"
            base = mn.replace("_e32", "").replace("_e64", "")
            self.trans = base in TRANS
            if base.startswith("v_permlane"):
                self.wr = allr
                self.rd = allr
            elif base.startswith("v_cmpx"):
                self.wr = R[0] | {"exec"}
                self.rd = set().union(*R[1:])
            elif base in ("v_add_co_u32", "v_sub_co_u32", "v_addc_co_u32", "v_subb_co_u32", "v_mad_u64_u32"):
                self.wr = R[0] | R[1]
                self.rd = set().union(*R[2:])
            else:
                self.wr = R[0]
                self.rd = set().union(*R[1:]) if len(R) > 1 else set()
                if base.startswith("v_fmac") or base.startswith("v_dot2c") or base.startswith("v_writelane"):
                    self.rd |= R[0]
            self.dpp = any(m.startswith(("row_", "quad_perm", "wave_")) for m in mods)
            if self.dpp:
                self.rd |= R[0]
        elif mn.startswith(("buffer_", "global_")):
            self.kind = "vmem"
            islds = "lds" in mods or "_lds_" in mn
            self.ldsdma = islds
            if "load" in mn and not islds:
                self.wr = R[0]
                self.rd = set().union(*R[1:])
            elif "atomic" in mn and "sc0" in mods:
                self.wr = R[0]
                self.rd = allr
            else:
                self.rd = allr
            self.widestore = ("store_dwordx4" in mn or "store_dwordx3" in mn)
            if self.widestore:
                self.sdata = R[0] if mn.startswith("buffer_") else R[1]
        elif mn.startswith("ds_"):
            self.kind = "ds"
            if "read" in mn or "permute" in mn or "swizzle" in mn or "_rtn" in mn:
                self.wr = R[0]
                self.rd = set().union(*R[1:])
            else:
                self.rd = allr
        elif mn.startswith(("s_load", "s_buffer_load", "s_memtime", "s_memrealtime")):
            self.kind = "smem"
            self.wr = R[0]
            self.rd = set().union(*R[1:]) if len(R) > 1 else set()
        elif mn.startswith("s_"):
            self.kind = "salu"
            if mn.startswith(("s_cmp", "s_cbranch", "s_branch", "s_waitcnt", "s_barrier", "s_endpgm", "s_setprio",
                              "s_sleep", "s_bitcmp")):
                self.rd = allr
            else:
                self.wr = R[0] if R else set()
                self.rd = set().union(*R[1:]) if len(R) > 1 else set()
                if "saveexec" in mn:
                    self.wr = self.wr | {"exec"}
        else:
            raise ValueError("unknown instruction: " + text)


def vec(s):
    return {r for r in s if r[0] in "va" and r not in ("vcc",)}


def sca(s):
    return {r for r in s if r[0] == "s" or r == "vcc"}


def need(p, c):
    n = 0
    if p.kind == "valu":
        pw = vec(p.wr)
        ps = sca(p.wr)
        if c.kind == "valu":
            base = c.mn
            if p.trans and not c.trans and pw & c.rd:
                n = max(n, 1)
            if p.trans and c.trans and pw & c.rd:
                n = max(n, 1)
            if base.startswith("v_permlane") and pw & c.rd:
                n = max(n, 2)
            if c.dpp and pw & c.rd:
                n = max(n, 2)
            if base.startswith(("v_readlane", "v_readfirstlane")) and pw & c.rd:
                n = max(n, 1)
            if ps & c.rd:
                n = max(n, 4 if base.startswith(("v_readlane", "v_writelane")) else 2)
            if "exec" in p.wr:
                n = max(n, 5 if c.dpp else 4)
        if p.mn.startswith("v_dot") and c.kind in ("valu", "vmem", "ds", "mfma") and c.mn != p.mn and pw & (c.rd | c.wr):
            n = max(n, 3)
        if c.kind == "mfma":
            if pw & c.rd:
                n = max(n, 2)
            if "exec" in p.wr:
                n = max(n, 4)
        if c.kind == "vmem" and ps & c.rd:
            n = max(n, 5)
        if c.kind == "salu" and ps & c.rd:
            n = max(n, 1)
    if p.kind == "mfma":
        t = {2: (4, 5, 1), 4: (6, 8, 3), 8: (10, 12, 7), 16: (18, 20, 15)}[p.passes]
        if c.kind == "mfma":
            if p.wr & c.ab:
                n = max(n, t[1])
            if p.wr & c.srcc and not (p.wr == c.srcc and p.passes == c.passes):
                n = max(n, t[0])
            if p.wr == c.srcc and p.passes == 2:
                n = max(n, 2)
            if (p.wr & c.wr) and not (p.wr == c.srcc):
                n = max(n, t[1])
        elif c.kind in ("valu", "vmem", "ds"):
            if p.wr & (c.rd | c.wr):
                n = max(n, t[1])
            if c.kind == "valu" and p.srcc & c.wr:
                n = max(n, t[2])
    if p.kind == "vmem" and getattr(p, "widestore", False):
        if c.kind in ("valu", "mfma") and p.sdata & c.wr:
            n = max(n, 2)
        elif c.kind in ("vmem", "ds") and p.sdata & c.wr:
            n = max(n, 1)
    if p.kind == "salu" and "m0" in p.wr:
        if c.kind == "vmem" and c.ldsdma:
            n = max(n, 1)
    if p.kind == "salu" and "exec" in p.wr:
        pass
    return n


class Asm:
    def __init__(self):
        self.lines = []
        self.nops_added = 0

    def __call__(self, s):
        for l in s.split("\n"):
            self.lines.append(l.strip())

    def raw(self, s):
        self.lines.append(s)

    def finish(self):
        out = []
        hist = []
        for l in self.lines:
            ins = Ins(l)
            if ins.kind is None:
                out.append(l if (ins.label or ins.empty or l.startswith(";")) else "  " + l)
                continue
            dist = 0
            pad = 0
            for p in reversed(hist):
                if dist >= 20:
                    break
                k = need(p, ins)
                if k > dist:
                    pad = max(pad, k - dist)
                dist += p.states
            while pad > 0:
                k = min(pad, 16)
                nop = "s_nop %d" % (k - 1)
                out.append("  " + nop)
                hist.append(Ins(nop))
                self.nops_added += 1
                pad -= k
            out.append("  " + l)
            hist.append(ins)
            if ins.mn in ("s_endpgm", "s_branch"):
                hist = []
        return "\n".join(out) + "\n"


def vr(b, n=1):
    return "v%d" % b if n == 1 else "v[%d:%d]" % (b, b + n - 1)


def ar(b, n=1):
    return "a%d" % b if n == 1 else "a[%d:%d]" % (b, b + n - 1)


def sr(b, n=1):
    return "s%d" % b if n == 1 else "s[%d:%d]" % (b, b + n - 1)
```

```python
import sys
from asmlib import Asm, vr, ar, sr

NAME = "interleave_layers__linear_attn_block__swiglu_ffn__prompt"
MB = 1 << 20
WS_XF = 0
WS_PQ = 4 * MB
WS_O = 8 * MB
WS_H = 12 * MB
WS_AUX = 28 * MB
AUX_ST = 0
AUX_CS = 65536
AUX_Z = 131072
AUX_KV = 262144
AUX_SIZE = AUX_KV + 32 * 8 * 4096

LOG2E = 0x3FB8AA3B
NLOG2E = 0xBFB8AA3B
EPS6 = 0x358637BD
EPS5 = 0x3727C5AC
INV1024 = 0x3A800000

OPT = {}


def opt(k, d):
    return OPT.get(k, d)


def srd(a, d, lo, hi, nrec):
    if lo != sr(d):
        a(f"s_mov_b32 {sr(d)}, {lo}")
    if hi != sr(d + 1):
        a(f"s_mov_b32 {sr(d+1)}, {hi}")
    a(f"s_mov_b32 {sr(d+2)}, {nrec}")
    a(f"s_mov_b32 {sr(d+3)}, 0x20000")


def srd_off(a, d, base, off, nrec):
    a(f"s_add_u32 {sr(d)}, {sr(base)}, {off}")
    a(f"s_addc_u32 {sr(d+1)}, {sr(base+1)}, 0")
    a(f"s_mov_b32 {sr(d+2)}, {nrec}")
    a(f"s_mov_b32 {sr(d+3)}, 0x20000")


def header(a, name):
    a(f".globl {name}")
    a(".p2align 8")
    a(f".type {name},@function")
    a(f"{name}:")


def descriptor(name, nvgpr, accum):
    return f""".amdhsa_kernel {name}
  .amdhsa_next_free_vgpr {nvgpr}
  .amdhsa_next_free_sgpr 96
  .amdhsa_accum_offset {accum}
  .amdhsa_group_segment_fixed_size 0
  .amdhsa_kernarg_size 80
  .amdhsa_user_sgpr_count 2
  .amdhsa_user_sgpr_kernarg_segment_ptr 1
  .amdhsa_system_sgpr_workgroup_id_x 1
.end_amdhsa_kernel
"""


def unpack(a, lo, hi, src):
    a(f"v_lshlrev_b32 {vr(lo)}, 16, {vr(src)}")
    a(f"v_and_b32 {vr(hi)}, 0xffff0000, {vr(src)}")


def gen_p0(a):
    header(a, "p0_kernel")
    a("s_cmp_ge_u32 s2, 416")
    a("s_cbranch_scc1 p0_end")
    a("s_load_dwordx4 s[4:7], s[0:1], 0")
    a("s_load_dwordx4 s[8:11], s[0:1], 32")
    a("s_load_dwordx2 s[12:13], s[0:1], 72")
    a("v_and_b32 v1, 63, v0")
    a("v_lshrrev_b32 v2, 6, v0")
    a("v_lshrrev_b32 v3, 3, v1")
    a("v_and_b32 v4, 7, v1")
    a("s_waitcnt lgkmcnt(0)")
    srd_off(a, 24, 12, WS_AUX, AUX_SIZE)
    a("s_cmp_ge_u32 s2, 256")
    a("s_cbranch_scc1 p0_cs")
    srd(a, 16, "s4", "s5", 4 * MB)
    srd_off(a, 20, 12, WS_XF, 4 * MB)
    a("s_lshl_b32 s3, s2, 3")
    a("v_add_u32 v5, s3, v3")
    a("v_lshl_add_u32 v6, v2, 5, v4")
    a("v_lshlrev_b32 v7, 11, v5")
    a("v_lshl_add_u32 v7, v6, 4, v7")
    for i in range(4):
        a(f"buffer_load_dwordx4 {vr(16+4*i,4)}, v7, s[16:19], 0 offen offset:{128*i}")
    a("v_lshrrev_b32 v8, 5, v5")
    a("v_lshlrev_b32 v8, 16, v8")
    a("v_and_b32 v9, 31, v5")
    a("v_lshl_add_u32 v8, v9, 4, v8")
    a("v_lshl_add_u32 v8, v6, 9, v8")
    a("s_mul_i32 s14, s2, 192")
    a(f"s_add_u32 s14, s14, {AUX_ST + 16384}")
    a("v_lshlrev_b32 v9, 2, v0")
    a("v_mov_b32 v10, 0")
    a("v_cmp_gt_u32 vcc, 48, v0")
    a("s_and_saveexec_b64 s[30:31], vcc")
    a("s_cbranch_execz p0_z")
    a("buffer_store_dword v10, v9, s[24:27], s14 offen")
    a("p0_z:")
    a("s_mov_b64 exec, s[30:31]")
    a("v_mov_b32 v11, 0")
    a("v_mov_b32 v12, 0")
    a("s_waitcnt vmcnt(0)")
    a("s_movk_i32 s15, 0x1000")
    for i in range(4):
        a(f"s_mul_i32 s14, s15, {i}")
        a(f"buffer_store_dwordx4 {vr(16+4*i,4)}, v8, s[20:23], s14 offen")
    for i in range(16):
        unpack(a, 13, 14, 16 + i)
        a("v_add_f32 v11, v11, v13")
        a("v_fmac_f32 v12, v13, v13")
        a("v_add_f32 v11, v11, v14")
        a("v_fmac_f32 v12, v14, v14")
    a("v_lshlrev_b32 v13, 7, v3")
    a("v_lshl_add_u32 v13, v2, 5, v13")
    a("v_lshl_add_u32 v13, v4, 2, v13")
    a("ds_write_b32 v13, v11")
    a("ds_write_b32 v13, v12 offset:1024")
    a("s_waitcnt lgkmcnt(0)")
    a("s_barrier")
    a("v_cmp_gt_u32 vcc, 16, v0")
    a("s_and_saveexec_b64 s[30:31], vcc")
    a("s_cbranch_execz p0_end")
    a("v_lshlrev_b32 v13, 7, v0")
    for i in range(8):
        a(f"ds_read_b128 {vr(32+4*i,4)}, v13 offset:{16*i}")
    a("s_waitcnt lgkmcnt(0)")
    for i in range(1, 32):
        a(f"v_add_f32 v32, v32, {vr(32+i)}")
    a("v_lshlrev_b32 v13, 13, v3")
    a("v_add_u32 v14, s3, v4")
    a("v_lshl_add_u32 v13, v14, 2, v13")
    a(f"buffer_store_dword v32, v13, s[24:27], 0 offen offset:{AUX_ST}")
    a("s_endpgm")
    a("p0_cs:")
    a("s_sub_u32 s3, s2, 256")
    a("s_cmp_lt_u32 s3, 104")
    a("s_cselect_b32 s16, s8, s10")
    a("s_cselect_b32 s17, s9, s11")
    a("s_cselect_b32 s14, 48, 104")
    a("s_cmp_lt_u32 s3, 48")
    a("s_cselect_b32 s16, s6, s16")
    a("s_cselect_b32 s17, s7, s17")
    a("s_cselect_b32 s14, 0, s14")
    a("s_movk_i32 s15, 7168")
    a("s_cselect_b32 s15, 6144, s15")
    a("s_lshl_b32 s18, s15, 10")
    a("s_mov_b32 s19, 0x20000")
    a("s_sub_u32 s14, s3, s14")
    a("s_lshl_b32 s14, s14, 7")
    a("v_lshl_add_u32 v5, v2, 8, v3")
    a("v_mul_lo_u32 v5, v5, s15")
    a("v_lshl_add_u32 v5, v4, 4, v5")
    a("s_lshl_b32 s15, s15, 3")
    for i in range(32):
        a(f"buffer_load_dwordx4 {vr(32+4*i,4)}, v5, s[16:19], s14 offen")
        a("s_add_u32 s14, s14, s15")
    for j in range(8):
        a(f"v_mov_b32 {vr(8+j)}, 0")
    for i in range(32):
        a(f"s_waitcnt vmcnt({31-i})")
        for j in range(4):
            unpack(a, 16, 17, 32 + 4 * i + j)
            a(f"v_pk_add_f32 {vr(8+2*j,2)}, {vr(8+2*j,2)}, v[16:17]")
    a("v_lshlrev_b32 v6, 5, v0")
    a("ds_write_b128 v6, v[8:11]")
    a("ds_write_b128 v6, v[12:15] offset:16")
    a("s_waitcnt lgkmcnt(0)")
    a("s_barrier")
    a("v_cmp_gt_u32 vcc, 64, v0")
    a("s_and_saveexec_b64 s[30:31], vcc")
    a("s_cbranch_execz p0_end")
    a("v_lshlrev_b32 v6, 2, v0")
    for h in range(4):
        for i in range(8):
            a(f"ds_read_b32 {vr(32+8*h+i)}, v6 offset:{256*(8*h+i)}")
        a("s_waitcnt lgkmcnt(0)")
    for i in range(1, 32):
        a(f"v_add_f32 v32, v32, {vr(32+i)}")
    a("s_lshl_b32 s3, s3, 8")
    a(f"s_add_u32 s3, s3, {AUX_CS}")
    a("buffer_store_dword v32, v6, s[24:27], s3 offen")
    a("p0_end:")
    a("s_endpgm")
    return [("p0_kernel", 160, 160)]


S_X = [8, 12]
S_W = 16
S_OUT = 20
S_AUX = 24
S_WAVE, S_MT, S_NT, S_XO, S_WK, S_CUR, S_OTH, S_DELTA, S_CNT = 30, 31, 32, 33, 34, 35, 36, 37, 38
V_L16 = 1
V_DMA = 2
V_RD = 10
ACC = 32


class Cfg:
    pass


def acc_reg(c, ms, j):
    return ACC + (ms * c.nw + j) * 16


def main_loop(a, c, pre_vm=None, shadow=None):
    mw, nw, G, sps = c.mw, c.nw, c.G, c.sps
    R = 2 * sps
    NG = R // G
    GPS = sps // G
    WF = R * mw * 4
    c.nagpr = WF + 2 * G * nw * 4

    def xreg(slot, ms):
        return (slot * mw + ms) * 4

    def wreg(par, e, j):
        return WF + ((par * G + e) * nw + j) * 4

    def reads(gi):
        out = []
        for e in range(G):
            st = gi * G + e
            stage, s = divmod(st, sps)
            for j in range(nw):
                av, extra = c.rd_off(j)
                for rd in range(2):
                    off = stage * c.stage_bytes + (16 * s + 4 * rd) * c.row_bytes + extra
                    assert off < 65536
                    out.append(("i", f"ds_read_b64_tr_b16 {ar(wreg(gi & 1, e, j) + 2 * rd, 2)}, {vr(av)} offset:{off}"))
        return out

    ndg = max(GPS - 1, 1)
    dma_of = [[] for _ in range(GPS)]
    span = min(ndg, opt(c.name + "_dmaspan", ndg))
    for i in range(c.ndma):
        dma_of[i * span // c.ndma].append(i)

    def vm_items(gi, it, prologue=False):
        out = []
        stage_l, gs = divmod(gi, GPS)
        if not (prologue and gi == 0):
            for e in range(G):
                rel = (gi - 1) * G + R + e
                slot = rel % R
                if rel % 4 == 0 and not (prologue and rel == R):
                    out.append(("i", f"s_add_u32 {sr(S_XO)}, {sr(S_XO)}, 0x1000"))
                for ms in range(mw):
                    out.append(("v", f"buffer_load_dwordx4 {ar(xreg(slot, ms), 4)}, {vr(V_L16)}, {sr(S_X[ms], 4)}, "
                                     f"{sr(S_XO)} offen offset:{(rel % 4) * 1024}", ("x", it * R + rel)))
        tgt = 2 * it + stage_l + c.ahead
        if c.ahead == 2:
            base, par = S_OTH, stage_l
        else:
            base, par = (S_OTH, 1) if stage_l == 0 else (S_CUR, 0)
        for i in dma_of[gs]:
            out.append(("i", f"s_add_u32 m0, {sr(base)}, {par * c.stage_bytes + i * 1024}"))
            out.append(("v", f"buffer_load_dwordx4 {vr(V_DMA + i)}, {sr(S_W, 4)}, {sr(S_WK)} offen lds", ("w", tgt)))
            if i == c.ndma - 1:
                out.append(("i", f"s_add_u32 {sr(S_WK)}, {sr(S_WK)}, {c.wstage}"))
        return out

    def swap_pairs():
        return [("i", f"s_sub_u32 {sr(S_DELTA)}, 0, {sr(S_DELTA)}"),
                ("i", f"s_mov_b32 s39, {sr(S_CUR)}"),
                ("i", f"s_mov_b32 {sr(S_CUR)}, {sr(S_OTH)}"),
                ("i", f"s_mov_b32 {sr(S_OTH)}, s39")]

    def body(it):
        out = []
        for gi in range(NG):
            stage_l, gs = divmod(gi, GPS)
            req = [("x", it * R + gi * G + e) for e in range(G)]
            last = gs == GPS - 1
            if last:
                req.append(("w", 2 * it + stage_l + 1))
            out.append(("wait", req, gi))
            if last:
                out.append(("i", "s_barrier"))
            mf = []
            for e in range(G):
                for j in range(nw):
                    for ms in range(mw):
                        d = vr(acc_reg(c, ms, j), 16)
                        w = ar(wreg(gi & 1, e, j), 4)
                        x = ar(xreg(gi * G + e, ms), 4)
                        A, B = (x, w) if c.noswap(j) else (w, x)
                        mf.append(("i", f"v_mfma_f32_32x32x16_bf16 {d}, {A}, {B}, {d}"))
            pre = []
            if gi == NG - 1:
                for v in c.rd_regs:
                    pre.append(("i", f"v_add_u32 {vr(v)}, {sr(S_DELTA)}, {vr(v)}"))
            rds = reads((gi + 1) % NG)
            vms = vm_items(gi, it)
            post = []
            if gi == NG - 1:
                post = swap_pairs() + [("i", f"s_sub_u32 {sr(S_CNT)}, {sr(S_CNT)}, 1"),
                                       ("i", f"s_cmp_lg_u32 {sr(S_CNT)}, 0")]
            n = len(mf)
            gaps = [[] for _ in range(n)]
            rpg = c.reads_per_gap
            gaps[0] += pre
            for i, r in enumerate(rds):
                gaps[min(i // rpg, n - 1)].append(r)
            units = []
            cur = []
            for itx in vms:
                cur.append(itx)
                if itx[0] == "v":
                    units.append(cur)
                    cur = []
            if cur:
                if units:
                    units[-1] += cur
                else:
                    units.append(cur)
            first = min((len(rds) + rpg - 1) // rpg, n - 1) if c.vm_late else 0
            avail = n - first
            for i, u in enumerate(units):
                g = first + (i * avail // max(len(units), 1))
                gaps[g] += u
            gaps[n - 1] += post
            for m, g in zip(mf, gaps):
                out.append(m)
                out += g
        return out

    pro = []
    if c.ahead == 3:
        for i in range(c.ndma):
            pro.append(("i", f"s_add_u32 m0, {sr(S_OTH)}, {i * 1024}"))
            pro.append(("v", f"buffer_load_dwordx4 {vr(V_DMA + i)}, {sr(S_W, 4)}, {sr(S_WK)} offen lds", ("w", 0)))
        pro.append(("i", f"s_add_u32 {sr(S_WK)}, {sr(S_WK)}, {c.wstage}"))
    for gi in range(NG):
        pro += vm_items(gi, -1, prologue=True)
    pro += swap_pairs()[1:]
    pro.append(("shadow",))
    pro.append(("wait", [("w", 0)], "pro"))
    pro.append(("i", "s_barrier"))
    pro += reads(0)

    seq = list(pro)
    for it in range(4):
        seq += body(it)
    waitn = {}
    issued = []
    for itx in seq:
        if itx[0] == "v":
            issued.append(itx[2])
        elif itx[0] == "wait":
            n = 63
            for r in itx[1]:
                idx = max(i for i, t in enumerate(issued) if t == r)
                n = min(n, len(issued) - 1 - idx)
            waitn.setdefault(itx[2], []).append(n)
    c.waits = waitn
    c.pro_vm = sum(1 for x in pro if x[0] == "v")

    def emit(items):
        for itx in items:
            if itx[0] in ("i", "v"):
                a(itx[1])
            elif itx[0] == "wait":
                a(f"s_waitcnt vmcnt({min(waitn[itx[2]])}) lgkmcnt(0)")
            elif itx[0] == "shadow":
                for r in range(mw * nw * 16):
                    a(f"v_mov_b32 {vr(ACC + r)}, 0")
                if shadow:
                    shadow()

    if pre_vm:
        pre_vm()
    emit(pro)
    a(".p2align 3")
    a(f"{c.name}_loop:")
    emit(body(0))
    a(f"s_cbranch_scc1 {c.name}_loop")
    a("s_nop 15")


def common_entry(a, c, names):
    for i, n in enumerate(names):
        header(a, n)
        a(f"s_mov_b32 s3, {i}")
        if i != len(names) - 1:
            a(f"s_branch {c.name}_body")
    a(f"{c.name}_body:")
    a("s_cmp_ge_u32 s2, 256")
    a(f"s_cbranch_scc1 {c.name}_end")


def lane_setup(a):
    a("v_lshrrev_b32 v2, 6, v0")
    a("v_and_b32 v0, 63, v0")
    a(f"v_readfirstlane_b32 {sr(S_WAVE)}, v2")
    a(f"v_lshlrev_b32 {vr(V_L16)}, 4, v0")
    a("v_bfe_u32 v12, v0, 2, 2")
    a("v_and_b32 v13, 1, v0")
    a("v_lshlrev_b32 v13, 1, v13")
    a("v_bfe_u32 v14, v0, 1, 1")
    a("v_or_b32 v13, v13, v14")
    a("v_bfe_u32 v14, v0, 4, 1")
    a("v_lshrrev_b32 v15, 5, v0")


def ln_stats(a, S, Q, t):
    a(f"v_mul_f32 {vr(S)}, {INV1024}, {vr(S)}")
    a(f"v_mul_f32 {vr(Q)}, {INV1024}, {vr(Q)}")
    a(f"v_fma_f32 {vr(Q)}, -{vr(S)}, {vr(S)}, {vr(Q)}")
    a(f"v_max_f32 {vr(Q)}, 0, {vr(Q)}")
    a(f"v_cvt_pk_bf16_f32 {vr(t)}, {vr(S)}, {vr(Q)}")
    a(f"v_lshlrev_b32 {vr(S)}, 16, {vr(t)}")
    a(f"v_and_b32 {vr(Q)}, 0xffff0000, {vr(t)}")
    a(f"v_add_f32 {vr(Q)}, {EPS5}, {vr(Q)}")
    a(f"v_cvt_pk_bf16_f32 {vr(t)}, {vr(Q)}, {vr(Q)}")
    a(f"v_lshlrev_b32 {vr(Q)}, 16, {vr(t)}")
    a(f"v_sqrt_f32 {vr(Q)}, {vr(Q)}")
    a(f"v_cvt_pk_bf16_f32 {vr(t)}, {vr(Q)}, {vr(Q)}")
    a(f"v_lshlrev_b32 {vr(Q)}, 16, {vr(t)}")


def bc(r):
    return vr(r, 2)


def tile_map_8x32(a):
    a("s_and_b32 s39, s2, 7")
    a("s_lshr_b32 s40, s2, 3")
    a("s_and_b32 s41, s39, 1")
    a("s_lshl_b32 s41, s41, 2")
    a("s_and_b32 s42, s40, 3")
    a(f"s_add_u32 {sr(S_MT)}, s41, s42")
    a("s_lshr_b32 s41, s39, 1")
    a("s_lshl_b32 s41, s41, 3")
    a("s_lshr_b32 s42, s40, 2")
    a(f"s_add_u32 {sr(S_NT)}, s41, s42")


def x_srds_256(a):
    a(f"s_lshl_b32 s44, {sr(S_MT)}, 3")
    a(f"s_lshl_b32 s39, {sr(S_WAVE)}, 1")
    a("s_add_u32 s44, s44, s39")
    a("s_lshl_b32 s39, s44, 16")
    srd_off(a, S_X[0], 6, "s39", 65536)
    a("s_add_u32 s39, s39, 0x10000")
    srd_off(a, S_X[1], 6, "s39", 65536)


def stats_loads(a, stbase):
    a("v_and_b32 v24, 31, v0")
    a("v_lshlrev_b32 v24, 2, v24")
    a("s_lshl_b32 s39, s44, 7")
    a(f"s_add_u32 s39, s39, {stbase}")
    a("s_add_u32 s40, s39, 0x2000")
    a(f"buffer_load_dword v16, v24, {sr(S_AUX,4)}, s39 offen")
    a(f"buffer_load_dword v17, v24, {sr(S_AUX,4)}, s40 offen")
    a(f"buffer_load_dword v20, v24, {sr(S_AUX,4)}, s39 offen offset:128")
    a(f"buffer_load_dword v21, v24, {sr(S_AUX,4)}, s40 offen offset:128")


def gen_g3(a):
    c = Cfg()
    c.name = "g3"
    c.mw, c.nw, c.sps, c.G, c.ndma = 2, 7, 4, 1, 7
    c.row_bytes = 224
    UP = 14464
    c.stage_bytes = 28800
    c.wstage = 64 * 7168
    c.ahead = opt("g3_ahead", 2)
    c.reads_per_gap = opt("g3_rpg", 2)
    c.vm_late = opt("g3_vmlate", 1)
    c.rd_regs = [V_RD]
    c.rd_off = lambda j: (V_RD, 32 * j)
    c.noswap = lambda j: False
    CS_LDS = 0
    RB = 1024
    lds = RB + 4 * c.stage_bytes
    common_entry(a, c, ["g3a_kernel", "g3b_kernel"])
    a("s_load_dwordx4 s[48:51], s[0:1], 32")
    a("s_load_dwordx2 s[6:7], s[0:1], 72")
    lane_setup(a)
    tile_map_8x32(a)
    a("v_lshl_add_u32 v16, v15, 3, v12")
    a("v_mul_u32_u24 v16, 224, v16")
    a("v_lshl_add_u32 v16, v13, 3, v16")
    a(f"v_mul_u32_u24 v17, {UP}, v14")
    a(f"v_add_u32 {vr(V_RD)}, v16, v17")
    a(f"v_add_u32 {vr(V_RD)}, {RB}, {vr(V_RD)}")
    a(f"s_lshr_b32 s45, {sr(S_WAVE)}, 1")
    a(f"s_and_b32 s46, {sr(S_WAVE)}, 1")
    a(f"s_mul_i32 s39, s45, {32*7168}")
    a(f"s_mul_i32 s40, {sr(S_NT)}, 224")
    a("s_add_u32 s39, s39, s40")
    for i in range(7):
        a(f"v_add_u32 v16, {64*i}, v0")
        a("v_mul_u32_u24 v17, 4682, v16")
        a("v_lshrrev_b32 v17, 16, v17")
        a(f"v_mul_u32_u24 v18, {7168 - 224}, v17")
        a("v_lshl_add_u32 v18, v16, 4, v18")
        a(f"v_add_u32 {vr(V_DMA+i)}, s39, v18")
    a(f"s_mul_i32 {sr(S_OTH)}, s46, {UP}")
    a("s_mul_i32 s39, s45, 7168")
    a(f"s_add_u32 {sr(S_OTH)}, {sr(S_OTH)}, s39")
    a(f"s_add_u32 {sr(S_OTH)}, {sr(S_OTH)}, {RB}")
    a(f"s_add_u32 {sr(S_CUR)}, {sr(S_OTH)}, {2*c.stage_bytes}")
    a(f"s_mov_b32 {sr(S_DELTA)}, {2*c.stage_bytes}")
    a(f"s_mov_b32 {sr(S_XO)}, 0")
    a(f"s_mov_b32 {sr(S_WK)}, 0")
    a(f"s_mov_b32 {sr(S_CNT)}, 8")
    a("s_waitcnt lgkmcnt(0)")
    a("s_cmp_eq_u32 s46, 0")
    a(f"s_cselect_b32 {sr(S_W)}, s48, s50")
    a(f"s_cselect_b32 {sr(S_W+1)}, s49, s51")
    srd(a, S_W, sr(S_W), sr(S_W + 1), 1024 * 7168)
    x_srds_256(a)
    srd_off(a, S_AUX, 6, WS_AUX, AUX_SIZE)

    def pre_vm():
        a("s_lshl_b32 s47, s3, 15")
        a(f"s_add_u32 s47, s47, {AUX_ST + 16384}")
        stats_loads(a, "s47")
        a("v_cmp_le_u32 vcc, 28, v0")
        a(f"v_mov_b32 v25, {3584*4 - 28*16}")
        a("v_cndmask_b32 v25, 0, v25, vcc")
        a(f"v_add_u32 v25, v25, {vr(V_L16)}")
        a(f"s_mul_i32 s39, {sr(S_NT)}, 448")
        a(f"s_add_u32 s39, s39, {AUX_CS + 3072*4}")
        a(f"s_mov_b32 m0, {CS_LDS}")
        a(f"buffer_load_dwordx4 v25, {sr(S_AUX,4)}, s39 offen lds")

    def shadow():
        a(f"s_waitcnt vmcnt({min(c.pro_vm, 63)})")
        for b in (16, 20):
            ln_stats(a, b, b + 1, 24)
            a(f"v_rcp_f32 {vr(b+2)}, {vr(b+1)}")
            a(f"v_sub_f32 {vr(b)}, 0, {vr(b)}")
            a(f"v_mul_f32 {vr(b+1)}, {vr(b+1)}, {vr(b+1)}")
            a(f"v_mul_f32 {vr(b+2)}, {NLOG2E}, {vr(b+2)}")
        a(f"s_mul_i32 s39, s44, {224*1024}")
        a(f"s_mul_i32 s40, {sr(S_NT)}, 7168")
        a("s_add_u32 s39, s39, s40")
        a(f"s_add_u32 s39, s39, {WS_H}")
        srd_off(a, S_OUT, 6, "s39", 224 * 1024 + 7168)

    main_loop(a, c, pre_vm, shadow)
    a(f"v_lshlrev_b32 v10, 5, v15")
    a("s_movk_i32 s40, 0x1000")
    a(f"s_mov_b32 s41, {224*1024}")
    a(f"s_mov_b32 s42, {224*1024 + 4096}")
    P = "op_sel_hi"
    for j in range(7):
        a(f"ds_read_b128 v[2:5], v10 offset:{CS_LDS + 64*j}")
        a(f"ds_read_b128 v[6:9], v10 offset:{CS_LDS + 64*j + 16}")
        a(f"ds_read_b128 v[24:27], v10 offset:{CS_LDS + 448 + 64*j}")
        a(f"ds_read_b128 v[28:31], v10 offset:{CS_LDS + 448 + 64*j + 16}")
        a("s_waitcnt lgkmcnt(0)")
        for ms in range(2):
            b = 16 + 4 * ms
            g = acc_reg(c, ms, j)
            u = g + 8
            for p in range(4):
                a(f"v_pk_fma_f32 {vr(g+2*p,2)}, {vr(b,2)}, {vr(2+2*p,2)}, {vr(g+2*p,2)} {P}:[0,1,1]")
            for p in range(4):
                a(f"v_pk_fma_f32 {vr(u+2*p,2)}, {vr(b,2)}, {vr(24+2*p,2)}, {vr(u+2*p,2)} {P}:[0,1,1]")
            for p in range(4):
                a(f"v_pk_mul_f32 {vr(u+2*p,2)}, {vr(u+2*p,2)}, {vr(g+2*p,2)}")
            for p in range(4):
                a(f"v_pk_mul_f32 {vr(g+2*p,2)}, {vr(g+2*p,2)}, {vr(b+2,2)} {P}:[1,0]")
            for p in range(8):
                a(f"v_exp_f32 {vr(g+p)}, {vr(g+p)}")
            for p in range(4):
                a(f"v_pk_fma_f32 {vr(g+2*p,2)}, {vr(g+2*p,2)}, {vr(b,2)}, {vr(b,2)} op_sel:[0,1,1] {P}:[1,1,1]")
            for p in range(8):
                a(f"v_rcp_f32 {vr(g+p)}, {vr(g+p)}")
            for p in range(4):
                a(f"v_pk_mul_f32 {vr(u+2*p,2)}, {vr(u+2*p,2)}, {vr(g+2*p,2)}")
            for p in range(4):
                a(f"v_cvt_pk_bf16_f32 {vr(g+p)}, {vr(u+2*p)}, {vr(u+2*p+1)}")
            so = [["0", "s40"], ["s41", "s42"]][ms][j >> 2]
            a(f"buffer_store_dwordx4 {vr(g,4)}, {vr(V_L16)}, {sr(S_OUT,4)}, {so} offen offset:{(j&3)*1024}")
    a(f"{c.name}_end:")
    a("s_endpgm")
    print("g3 waits", c.waits, file=sys.stderr)
    return [(n, 256 + c.nagpr, 256) for n in ("g3a_kernel", "g3b_kernel")], lds


def phi(a, regs, t0):
    n = len(regs)
    for i in range(0, n, 2):
        assert regs[i + 1] == regs[i] + 1 and regs[i] % 2 == 0
        a(f"v_pk_mul_f32 {vr(t0+i,2)}, {vr(regs[i],2)}, s[52:53]")
    for i in range(n):
        a(f"v_exp_f32 {vr(t0+i)}, {vr(t0+i)} clamp")
    for i in range(n):
        a(f"v_max_f32 {vr(regs[i])}, {EPS6}, {vr(regs[i])}")
    for i in range(0, n, 2):
        a(f"v_pk_add_f32 {vr(regs[i],2)}, {vr(regs[i],2)}, {vr(t0+i,2)}")


def gen_g1(a):
    c = Cfg()
    c.name = "g1"
    c.mw, c.nw, c.sps, c.G, c.ndma = 2, 3, 8, opt("g1_G", 2), 6
    c.row_bytes = 192
    c.stage_bytes = 128 * 192
    c.wstage = 128 * 6144
    c.ahead = opt("g1_ahead", 2)
    c.reads_per_gap = opt("g1_rpg", 2)
    c.vm_late = opt("g1_vmlate", 1)
    c.rd_regs = [V_RD]
    c.rd_off = lambda j: (V_RD, 64 * j)
    c.noswap = lambda j: j > 0
    CS_LDS = 0
    ST_LDS = CS_LDS + 1024
    RB = 3072
    KV_LDS = RB + 4 * c.stage_bytes
    lds = KV_LDS + 32768
    common_entry(a, c, ["g1a_kernel", "g1b_kernel"])
    a("s_load_dwordx2 s[4:5], s[0:1], 8")
    a("s_load_dwordx2 s[6:7], s[0:1], 72")
    lane_setup(a)
    tile_map_8x32(a)
    a("v_lshl_add_u32 v16, v15, 3, v12")
    a("v_mul_u32_u24 v16, 192, v16")
    a("v_lshl_add_u32 v17, v14, 2, v13")
    a(f"v_lshl_add_u32 {vr(V_RD)}, v17, 3, v16")
    a(f"v_add_u32 {vr(V_RD)}, {RB}, {vr(V_RD)}")
    a(f"s_mul_i32 s39, {sr(S_WAVE)}, {32*6144}")
    a(f"s_lshl_b32 s40, {sr(S_NT)}, 6")
    a("s_add_u32 s39, s39, s40")
    for i in range(3):
        a(f"v_add_u32 v16, {64*i}, v0")
        a("v_mul_u32_u24 v17, 5462, v16")
        a("v_lshrrev_b32 v17, 16, v17")
        a("v_mul_u32_u24 v18, 12, v17")
        a("v_sub_u32 v18, v16, v18")
        a("v_mul_u32_u24 v17, 6144, v17")
        a("v_lshrrev_b32 v19, 2, v18")
        a("v_lshl_add_u32 v17, v19, 11, v17")
        a("v_and_b32 v18, 3, v18")
        a("v_lshl_add_u32 v17, v18, 4, v17")
        a(f"v_add_u32 {vr(V_DMA+i)}, s39, v17")
        a(f"v_add_u32 {vr(V_DMA+3+i)}, {16*6144}, {vr(V_DMA+i)}")
    a(f"s_mul_i32 {sr(S_OTH)}, {sr(S_WAVE)}, 6144")
    a(f"s_add_u32 {sr(S_OTH)}, {sr(S_OTH)}, {RB}")
    a(f"s_add_u32 {sr(S_CUR)}, {sr(S_OTH)}, {2*c.stage_bytes}")
    a(f"s_mov_b32 {sr(S_DELTA)}, {2*c.stage_bytes}")
    a(f"s_mov_b32 {sr(S_XO)}, 0")
    a(f"s_mov_b32 {sr(S_WK)}, 0")
    a(f"s_mov_b32 {sr(S_CNT)}, 4")
    a("s_waitcnt lgkmcnt(0)")
    srd(a, S_W, "s4", "s5", 1024 * 6144)
    x_srds_256(a)
    srd_off(a, S_AUX, 6, WS_AUX, AUX_SIZE)

    def pre_vm():
        a("s_lshl_b32 s47, s3, 15")
        a(f"s_add_u32 s47, s47, {AUX_ST}")
        stats_loads(a, "s47")
        a("v_lshrrev_b32 v25, 3, v0")
        a("v_lshlrev_b32 v25, 12, v25")
        a("v_and_b32 v26, 7, v0")
        a("v_lshl_add_u32 v25, v26, 4, v25")
        a(f"s_lshl_b32 s39, {sr(S_NT)}, 7")
        a(f"s_add_u32 s39, s39, {AUX_CS}")
        a(f"s_mov_b32 m0, {CS_LDS}")
        a(f"buffer_load_dwordx4 v25, {sr(S_AUX,4)}, s39 offen lds")

    def shadow():
        a(f"s_waitcnt vmcnt({min(c.pro_vm, 63)})")
        a(f"s_lshl_b32 s39, {sr(S_WAVE)}, 9")
        a("v_add_u32 v25, s39, v24")
        for ms, b in enumerate((16, 20)):
            ln_stats(a, b, b + 1, 26)
            a(f"v_rcp_f32 {vr(b+2)}, {vr(b+1)}")
            a(f"v_sub_f32 {vr(b)}, 0, {vr(b)}")
            a(f"ds_write_b32 v25, {vr(b)} offset:{ST_LDS + 128*ms}")
            a(f"ds_write_b32 v25, {vr(b+2)} offset:{ST_LDS + 256 + 128*ms}")
        a("s_lshl_b32 s39, s44, 16")
        a(f"s_lshl_b32 s40, {sr(S_NT)}, 11")
        a("s_add_u32 s39, s39, s40")
        a(f"s_add_u32 s39, s39, {WS_PQ}")
        srd_off(a, S_OUT, 6, "s39", 65536 + 2048)
        a(f"s_mov_b32 s52, {LOG2E}")
        a(f"s_mov_b32 s53, {LOG2E}")
        a(f"s_mov_b32 s54, {EPS6}")
        a(f"s_mov_b32 s55, {EPS6}")

    main_loop(a, c, pre_vm, shadow)
    P = "op_sel_hi"
    T = 128
    a("v_and_b32 v2, 3, v0")
    a("v_bfe_u32 v3, v0, 2, 1")
    a("v_lshl_add_u32 v2, v3, 3, v2")
    a("v_bfe_u32 v3, v0, 3, 1")
    a("v_lshl_add_u32 v2, v3, 2, v2")
    a("v_lshl_add_u32 v2, v14, 4, v2")
    a("v_lshlrev_b32 v2, 2, v2")
    a(f"ds_read_b32 v4, v2 offset:{CS_LDS + 128}")
    a(f"ds_read_b32 v6, v2 offset:{CS_LDS + 256}")
    a(f"s_lshl_b32 s39, {sr(S_WAVE)}, 9")
    a("v_lshlrev_b32 v3, 4, v15")
    a("v_add_u32 v3, s39, v3")
    KVA, ZA, ONES = 192, 208, 224
    for i in range(4):
        a(f"v_mov_b32 {vr(ONES+i)}, 0x3f803f80")
    for ms in range(2):
        for rg in range(4):
            a(f"ds_read_b128 {vr(T+4*rg,4)}, v3 offset:{ST_LDS + 128*ms + 32*rg}")
            a(f"ds_read_b128 {vr(T+16+4*rg,4)}, v3 offset:{ST_LDS + 256 + 128*ms + 32*rg}")
        a("s_waitcnt lgkmcnt(0)")
        k = acc_reg(c, ms, 1)
        v = acc_reg(c, ms, 2)
        for p in range(8):
            a(f"v_pk_fma_f32 {vr(k+2*p,2)}, {vr(T+2*p,2)}, v[4:5], {vr(k+2*p,2)} {P}:[1,0,1]")
        for p in range(8):
            a(f"v_pk_fma_f32 {vr(v+2*p,2)}, {vr(T+2*p,2)}, v[6:7], {vr(v+2*p,2)} {P}:[1,0,1]")
        for p in range(8):
            a(f"v_pk_fma_f32 {vr(k+2*p,2)}, {vr(k+2*p,2)}, {vr(T+16+2*p,2)}, s[54:55]")
        for p in range(8):
            a(f"v_pk_mul_f32 {vr(v+2*p,2)}, {vr(v+2*p,2)}, {vr(T+16+2*p,2)}")
        phi(a, list(range(k, k + 16)), T + 32)
        for p in range(8):
            a(f"v_cvt_pk_bf16_f32 {vr(k+p)}, {vr(k+2*p)}, {vr(k+2*p+1)}")
        for p in range(8):
            a(f"v_cvt_pk_bf16_f32 {vr(v+p)}, {vr(v+2*p)}, {vr(v+2*p+1)}")
        for s in range(2):
            first = ms == 0 and s == 0
            a(f"v_mfma_f32_32x32x16_bf16 {vr(KVA,16)}, {vr(k+4*s,4)}, {vr(v+4*s,4)}, {'0' if first else vr(KVA,16)}")
            a(f"v_mfma_f32_32x32x16_bf16 {vr(ZA,16)}, {vr(k+4*s,4)}, {vr(ONES,4)}, {'0' if first else vr(ZA,16)}")
    a("v_lshlrev_b32 v3, 5, v15")
    for rg in range(4):
        a(f"ds_read_b128 {vr(T+4*rg,4)}, v3 offset:{CS_LDS + 64*(rg>>1) + 16*(rg&1)}")
    a(f"s_lshl_b32 s39, {sr(S_WAVE)}, 13")
    a(f"v_add_u32 v8, s39, {vr(V_L16)}")
    a(f"v_add_u32 v8, {KV_LDS}, v8")
    for rg in range(8):
        a(f"ds_write_b128 v8, {vr(KVA+4*rg,4)} offset:{1024*rg}")
    a("s_waitcnt lgkmcnt(0)")
    a("s_barrier")
    a(f"s_lshl_b32 s39, {sr(S_WAVE)}, 10")
    a(f"v_add_u32 v8, s39, {vr(V_L16)}")
    a(f"v_add_u32 v8, {KV_LDS}, v8")
    for w in range(4):
        a(f"ds_read_b128 {vr(KVA+4*w,4)}, v8 offset:{8192*w}")
        a(f"ds_read_b128 {vr(ZA+4*w,4)}, v8 offset:{8192*w + 4096}")
    a("s_mov_b32 s40, 0x10000")
    for ms in range(2):
        b = 16 + 4 * ms
        q = acc_reg(c, ms, 0)
        for p in range(8):
            a(f"v_pk_fma_f32 {vr(q+2*p,2)}, {vr(b,2)}, {vr(T+2*p,2)}, {vr(q+2*p,2)} {P}:[0,1,1]")
        for p in range(8):
            a(f"v_pk_fma_f32 {vr(q+2*p,2)}, {vr(q+2*p,2)}, {vr(b+2,2)}, s[54:55] {P}:[1,0,1]")
        phi(a, list(range(q, q + 16)), T + 32)
        for p in range(8):
            a(f"v_cvt_pk_bf16_f32 {vr(q+p)}, {vr(q+2*p)}, {vr(q+2*p+1)}")
        for s in range(2):
            a(f"buffer_store_dwordx4 {vr(q+4*s,4)}, {vr(V_L16)}, {sr(S_OUT,4)}, {['0','s40'][ms]} offen offset:{1024*s}")
    a("s_waitcnt lgkmcnt(0)")
    for base in (KVA, ZA):
        for w in range(1, 4):
            for p in range(2):
                a(f"v_pk_add_f32 {vr(base+2*p,2)}, {vr(base+2*p,2)}, {vr(base+4*w+2*p,2)}")
    a(f"s_lshl_b32 s39, {sr(S_NT)}, 3")
    a(f"s_add_u32 s39, s39, {sr(S_MT)}")
    a("s_lshl_b32 s40, s39, 2")
    a(f"s_add_u32 s40, s40, {sr(S_WAVE)}")
    a("s_lshl_b32 s40, s40, 10")
    a(f"s_add_u32 s40, s40, {AUX_KV}")
    a(f"buffer_store_dwordx4 {vr(KVA,4)}, {vr(V_L16)}, {sr(S_AUX,4)}, s40 offen")
    a("s_lshl_b32 s39, s39, 7")
    a(f"s_lshl_b32 s40, {sr(S_WAVE)}, 4")
    a("s_add_u32 s39, s39, s40")
    a(f"s_add_u32 s39, s39, {AUX_Z}")
    a("v_lshlrev_b32 v3, 6, v15")
    a("s_mov_b32 exec_lo, 1")
    a("s_mov_b32 exec_hi, 1")
    a(f"buffer_store_dwordx4 {vr(ZA,4)}, v3, {sr(S_AUX,4)}, s39 offen")
    a(f"{c.name}_end:")
    a("s_endpgm")
    print("g1 waits", c.waits, file=sys.stderr)
    return [(n, 256 + c.nagpr, 256) for n in ("g1a_kernel", "g1b_kernel")], lds


def gen_att(a):
    header(a, "att_kernel")
    a("s_cmp_ge_u32 s2, 256")
    a("s_cbranch_scc1 att_end")
    a("s_load_dwordx2 s[6:7], s[0:1], 72")
    lane_setup(a)
    tile_map_8x32(a)
    a("s_waitcnt lgkmcnt(0)")
    srd_off(a, S_AUX, 6, WS_AUX, AUX_SIZE)
    a(f"s_lshl_b32 s39, {sr(S_NT)}, 15")
    a(f"s_lshl_b32 s40, {sr(S_WAVE)}, 10")
    a("s_add_u32 s39, s39, s40")
    a(f"s_add_u32 s39, s39, {AUX_KV}")
    for p in range(8):
        a(f"buffer_load_dwordx4 {vr(32+4*p,4)}, {vr(V_L16)}, {sr(S_AUX,4)}, s39 offen")
        a("s_add_u32 s39, s39, 0x1000")
    a(f"s_lshl_b32 s39, {sr(S_NT)}, 10")
    a(f"s_lshl_b32 s40, {sr(S_WAVE)}, 4")
    a("s_add_u32 s39, s39, s40")
    a(f"s_add_u32 s39, s39, {AUX_Z}")
    a("v_lshlrev_b32 v3, 6, v15")
    for p in range(8):
        a(f"buffer_load_dwordx4 {vr(64+4*p,4)}, v3, {sr(S_AUX,4)}, s39 offen offset:{128*p}")
    a(f"s_lshl_b32 s44, {sr(S_MT)}, 3")
    a(f"s_lshl_b32 s39, {sr(S_WAVE)}, 1")
    a("s_add_u32 s44, s44, s39")
    a("s_lshl_b32 s39, s44, 16")
    a(f"s_lshl_b32 s40, {sr(S_NT)}, 11")
    a("s_add_u32 s39, s39, s40")
    a(f"s_add_u32 s40, s39, {WS_PQ}")
    srd_off(a, S_X[0], 6, "s40", 65536 + 2048)
    a(f"s_add_u32 s40, s39, {WS_O}")
    srd_off(a, S_OUT, 6, "s40", 65536 + 2048)
    a("s_mov_b32 s40, 0x10000")
    for ms in range(2):
        for s in range(2):
            a(f"buffer_load_dwordx4 {vr(16+8*ms+4*s,4)}, {vr(V_L16)}, {sr(S_X[0],4)}, {['0','s40'][ms]} offen offset:{1024*s}")
    a(f"s_lshr_b32 s39, {sr(S_WAVE)}, 1")
    a("s_lshl_b32 s39, s39, 10")
    a(f"s_and_b32 s41, {sr(S_WAVE)}, 1")
    a("s_lshl_b32 s41, s41, 3")
    a("s_add_u32 s39, s39, s41")
    a(f"v_add_u32 v4, s39, {vr(V_L16)}")
    for base, wn, off in ((32, 12, 0), (64, 4, 2048)):
        a(f"s_waitcnt vmcnt({wn})")
        for p in range(1, 8):
            for h in range(2):
                a(f"v_pk_add_f32 {vr(base+2*h,2)}, {vr(base+2*h,2)}, {vr(base+4*p+2*h,2)}")
        a(f"v_cvt_pk_bf16_f32 {vr(base)}, {vr(base)}, {vr(base+1)}")
        a(f"v_cvt_pk_bf16_f32 {vr(base+1)}, {vr(base+2)}, {vr(base+3)}")
        a(f"ds_write_b64 v4, {vr(base,2)} offset:{off}")
    a("s_waitcnt lgkmcnt(0)")
    a("s_barrier")
    for i in range(4):
        a(f"ds_read_b128 {vr(96+4*i,4)}, {vr(V_L16)} offset:{1024*i}")
    a("s_waitcnt vmcnt(0) lgkmcnt(0)")
    for ms in range(2):
        for q in range(2):
            d = 32 + 32 * ms + 16 * q
            a(f"v_mfma_f32_32x32x16_bf16 {vr(d,16)}, {vr(96+8*q,4)}, {vr(16+8*ms,4)}, 0")
            a(f"v_mfma_f32_32x32x16_bf16 {vr(d,16)}, {vr(96+8*q+4,4)}, {vr(16+8*ms+4,4)}, {vr(d,16)}")
    for ms in range(2):
        d = 32 + 32 * ms
        a(f"v_add_f32 {vr(d+16)}, {EPS6}, {vr(d+16)}")
        a(f"v_rcp_f32 {vr(d+16)}, {vr(d+16)}")
        for p in range(8):
            a(f"v_pk_mul_f32 {vr(d+2*p,2)}, {vr(d+2*p,2)}, {vr(d+16,2)} op_sel_hi:[1,0]")
        for p in range(8):
            a(f"v_cvt_pk_bf16_f32 {vr(d+p)}, {vr(d+2*p)}, {vr(d+2*p+1)}")
        for s in range(2):
            a(f"buffer_store_dwordx4 {vr(d+4*s,4)}, {vr(V_L16)}, {sr(S_OUT,4)}, {['0','s40'][ms]} offen offset:{1024*s}")
    a("att_end:")
    a("s_endpgm")
    return [("att_kernel", 112, 112)]


def gen_g24(a):
    c = Cfg()
    c.name = "g24"
    c.mw, c.nw, c.sps, c.G, c.ndma = 1, 2, 16, opt("g24_G", 4), 8
    c.row_bytes = 128
    c.stage_bytes = 32768
    c.wstage = 256 * 2048
    c.ahead = opt("g24_ahead", 3)
    c.reads_per_gap = opt("g24_rpg", 3)
    c.vm_late = opt("g24_vmlate", 0)
    c.rd_regs = [V_RD, V_RD + 1]
    c.rd_off = lambda j: (V_RD + j, 0)
    c.noswap = lambda j: False
    lds = 4 * c.stage_bytes
    names = ["g2a_kernel", "g4a_kernel", "g2b_kernel", "g4b_kernel"]
    common_entry(a, c, names)
    a("s_load_dwordx2 s[4:5], s[0:1], 16")
    a("s_load_dwordx4 s[48:51], s[0:1], 48")
    a("s_load_dwordx2 s[6:7], s[0:1], 72")
    lane_setup(a)
    a("s_and_b32 s39, s2, 7")
    a("s_lshr_b32 s40, s2, 3")
    a("s_and_b32 s41, s39, 3")
    a("s_lshl_b32 s41, s41, 2")
    a("s_and_b32 s42, s40, 3")
    a(f"s_add_u32 {sr(S_MT)}, s41, s42")
    a("s_lshr_b32 s41, s39, 2")
    a("s_lshl_b32 s41, s41, 3")
    a("s_lshr_b32 s42, s40, 2")
    a(f"s_add_u32 {sr(S_NT)}, s41, s42")
    a("v_lshl_add_u32 v16, v15, 3, v12")
    a("v_lshlrev_b32 v16, 7, v16")
    a("v_lshrrev_b32 v17, 1, v12")
    a("v_lshl_add_u32 v16, v17, 6, v16")
    a("v_lshl_add_u32 v17, v14, 2, v13")
    a(f"v_lshl_add_u32 {vr(V_RD)}, v17, 3, v16")
    a(f"v_xor_b32 {vr(V_RD+1)}, 64, {vr(V_RD)}")
    a(f"s_lshl_b32 s39, {sr(S_WAVE)}, 17")
    a(f"s_lshl_b32 s40, {sr(S_NT)}, 7")
    a("s_add_u32 s39, s39, s40")
    a("v_lshrrev_b32 v16, 3, v0")
    a("v_lshlrev_b32 v16, 11, v16")
    a("v_and_b32 v17, 7, v0")
    a("v_lshlrev_b32 v18, 2, v14")
    a("v_xor_b32 v17, v17, v18")
    a("v_lshl_add_u32 v16, v17, 4, v16")
    a(f"v_add_u32 {vr(V_DMA)}, s39, v16")
    for i in range(1, 8):
        a(f"v_add_u32 {vr(V_DMA+i)}, {16384*i}, {vr(V_DMA)}")
    a(f"s_lshl_b32 {sr(S_OTH)}, {sr(S_WAVE)}, 13")
    a(f"s_add_u32 {sr(S_CUR)}, {sr(S_OTH)}, {2*c.stage_bytes}")
    a(f"s_mov_b32 {sr(S_DELTA)}, {2*c.stage_bytes}")
    a(f"s_mov_b32 {sr(S_XO)}, 0")
    a(f"s_mov_b32 {sr(S_WK)}, 0")
    a(f"s_lshl_b32 s44, {sr(S_MT)}, 2")
    a(f"s_add_u32 s44, s44, {sr(S_WAVE)}")
    a("s_waitcnt lgkmcnt(0)")
    a("s_bitcmp1_b32 s3, 0")
    a(f"s_cselect_b32 {sr(S_CNT)}, 7, 2")
    a(f"s_cselect_b32 {sr(S_W)}, s48, s4")
    a(f"s_cselect_b32 {sr(S_W+1)}, s49, s5")
    a(f"s_mov_b32 s39, {1024*2048}")
    a(f"s_cselect_b32 {sr(S_W+2)}, {3584*2048}, s39")
    a(f"s_mov_b32 {sr(S_W+3)}, 0x20000")
    a("s_mov_b32 s39, 0x10000")
    a(f"s_cselect_b32 s40, {224*1024}, s39")
    a(f"s_mov_b32 s39, {WS_O}")
    a(f"s_cselect_b32 s41, {WS_H}, s39")
    a("s_mul_i32 s39, s44, s40")
    a("s_add_u32 s39, s39, s41")
    srd_off(a, S_X[0], 6, "s39", "s40")
    srd_off(a, S_AUX, 6, WS_AUX, AUX_SIZE)
    a("s_lshl_b32 s39, s44, 16")
    a(f"s_lshl_b32 s40, {sr(S_NT)}, 12")
    a("s_add_u32 s39, s39, s40")
    srd_off(a, S_OUT, 6, "s39", 4096)

    def pre_vm():
        for b in range(4):
            a(f"buffer_load_dwordx4 {vr(16+4*b,4)}, {vr(V_L16)}, {sr(S_OUT,4)}, 0 offen offset:{1024*b}")

    main_loop(a, c, pre_vm, None)
    T = 64
    for i in range(16):
        unpack(a, T + 2 * i, T + 2 * i + 1, 16 + i)
    for i in range(16):
        a(f"v_pk_add_f32 {vr(ACC+2*i,2)}, {vr(ACC+2*i,2)}, {vr(T+2*i,2)}")
    for i in range(16):
        a(f"v_cvt_pk_bf16_f32 {vr(16+i)}, {vr(ACC+2*i)}, {vr(ACC+2*i+1)}")
    a("s_cmp_eq_u32 s3, 3")
    a("s_cbranch_scc1 g24_final")
    for b in range(4):
        a(f"buffer_store_dwordx4 {vr(16+4*b,4)}, {vr(V_L16)}, {sr(S_OUT,4)}, 0 offen offset:{1024*b}")
    a(f"v_pk_mul_f32 v[4:5], {vr(ACC,2)}, {vr(ACC,2)}")
    for i in range(1, 16):
        a(f"v_pk_fma_f32 v[4:5], {vr(ACC+2*i,2)}, {vr(ACC+2*i,2)}, v[4:5]")
        a(f"v_pk_add_f32 {vr(ACC,2)}, {vr(ACC,2)}, {vr(ACC+2*i,2)}")
    a(f"v_add_f32 v2, {vr(ACC)}, {vr(ACC+1)}")
    a("v_add_f32 v3, v4, v5")
    a("v_permlane32_swap_b32 v2, v3")
    a("v_add_f32 v2, v2, v3")
    a("v_and_b32 v3, 31, v0")
    a("v_lshlrev_b32 v3, 2, v3")
    a("v_lshl_add_u32 v3, v15, 13, v3")
    a("s_add_u32 s39, s3, 1")
    a("s_lshl_b32 s39, s39, 14")
    a("s_lshl_b32 s40, s44, 7")
    a("s_add_u32 s39, s39, s40")
    a(f"buffer_atomic_add_f32 v2, v3, {sr(S_AUX,4)}, s39 offen offset:{AUX_ST}")
    a("s_endpgm")
    a("g24_final:")
    srd(a, S_OUT, "s50", "s51", 4 * MB)
    a("v_and_b32 v3, 31, v0")
    a("v_lshlrev_b32 v3, 11, v3")
    a("v_lshl_add_u32 v3, v15, 4, v3")
    a("s_lshl_b32 s39, s44, 16")
    a(f"s_lshl_b32 s40, {sr(S_NT)}, 7")
    a("s_add_u32 s39, s39, s40")
    for b in range(4):
        a(f"buffer_store_dwordx4 {vr(16+4*b,4)}, v3, {sr(S_OUT,4)}, s39 offen offset:{32*b}")
    a(f"{c.name}_end:")
    a("s_endpgm")
    print("g24 waits", c.waits, file=sys.stderr)
    return [(n, 128 + c.nagpr, 128) for n in names], lds


def build():
    a = Asm()
    kernels = []
    kernels += gen_p0(a)
    k, lds1 = gen_g1(a)
    kernels += k
    kernels += gen_att(a)
    k, lds24 = gen_g24(a)
    kernels += k
    k, lds3 = gen_g3(a)
    kernels += k
    launches = [("p0_kernel", 416, 8192)]
    for L in "ab":
        launches += [(f"g1{L}_kernel", 256, lds1), ("att_kernel", 256, 4096), (f"g2{L}_kernel", 256, lds24),
                     (f"g3{L}_kernel", 256, lds3), (f"g4{L}_kernel", 256, lds24)]
    out = "; generated by work/gen.py\n"
    for n, g, l in launches:
        out += f"; @launch kernel={n} grid=({g},1,1) block=(256,1,1) lds={l}\n"
    out += '.amdgcn_target "amdgcn-amd-amdhsa--gfx950"\n.text\n'
    out += a.finish()
    out += '.section .rodata,"a"\n'
    for n, nv, acc in kernels:
        out += ".p2align 6\n" + descriptor(n, nv, acc)
    print("nops added", a.nops_added, file=sys.stderr)
    return out


if __name__ == "__main__":
    dst = f"cdna_kernels/{NAME}.s"
    for arg in sys.argv[1:]:
        if "=" in arg:
            k, v = arg.split("=")
            OPT[k] = int(v)
        else:
            dst = arg
    open(dst, "w").write(build())
```

```python
import sys
from asmlib import Asm, vr, ar, sr

NAME = "interleave_layers__linear_attn_block__swiglu_ffn__prompt"
MB = 1 << 20
WS_XF = 0
WS_O = 16 * MB
WS_H = 64 * MB
WS_AUX = 28 * MB
AUX_ST = 0
AUX_CS = 65536
CS_PART = 320 * 128
AUX_Z = 262144
AUX_CNT = 393216
AUX_KV = 524288
AUX_SIZE = AUX_KV + 2 * 32 * 8 * 4096
K_KV, K_O, K_X1, K_H, K_X2 = range(5)
WS_W1 = 32 * MB
WS_W2 = 38 * MB
WS_W3 = 40 * MB
WS_W4 = 54 * MB

LOG2E = 0x3FB8AA3B
NLOG2E = 0xBFB8AA3B
EPS6 = 0x358637BD
EPS5 = 0x3727C5AC
INV1024 = 0x3A800000

OPT = {}


def opt(k, d):
    return OPT.get(k, d)


def srd(a, d, lo, hi, nrec):
    if lo != sr(d):
        a(f"s_mov_b32 {sr(d)}, {lo}")
    if hi != sr(d + 1):
        a(f"s_mov_b32 {sr(d+1)}, {hi}")
    a(f"s_mov_b32 {sr(d+2)}, {nrec}")
    a(f"s_mov_b32 {sr(d+3)}, 0x20000")


def srd_off(a, d, base, off, nrec):
    a(f"s_add_u32 {sr(d)}, {sr(base)}, {off}")
    a(f"s_addc_u32 {sr(d+1)}, {sr(base+1)}, 0")
    a(f"s_mov_b32 {sr(d+2)}, {nrec}")
    a(f"s_mov_b32 {sr(d+3)}, 0x20000")


def header(a, name):
    a(f".globl {name}")
    a(".p2align 8")
    a(f".type {name},@function")
    a(f"{name}:")


def descriptor(name, nvgpr, accum):
    return f""".amdhsa_kernel {name}
  .amdhsa_next_free_vgpr {nvgpr}
  .amdhsa_next_free_sgpr 96
  .amdhsa_accum_offset {accum}
  .amdhsa_group_segment_fixed_size 0
  .amdhsa_kernarg_size 80
  .amdhsa_user_sgpr_count 2
  .amdhsa_user_sgpr_kernarg_segment_ptr 1
  .amdhsa_system_sgpr_workgroup_id_x 1
.end_amdhsa_kernel
"""


WS_DBG = 128 * MB


def stamp(a, i):
    if opt("stamps", 0):
        a(f"s_memrealtime {sr(60+2*i,2)}")


def stamp_flush(a, pid):
    if not opt("stamps", 0):
        return
    a("s_mov_b64 exec, 1")
    a(f"s_lshl_b32 s76, {pid}, 18")
    a("s_lshl_b32 s77, s2, 8")
    a("s_add_u32 s76, s76, s77")
    a("s_lshl_b32 s77, s30, 6")
    a("s_add_u32 s76, s76, s77")
    srd_off(a, 80, 6, WS_DBG, 16 * MB)
    a("v_mov_b32 v8, 0")
    a("s_waitcnt lgkmcnt(0)")
    for q in range(4):
        for i in range(4):
            a(f"v_mov_b32 {vr(4+i)}, {sr(60+4*q+i)}")
        a(f"buffer_store_dwordx4 v[4:7], v8, s[80:83], s76 offen offset:{16*q}")
    a("s_mov_b64 exec, -1")


def unpack(a, lo, hi, src):
    a(f"v_lshlrev_b32 {vr(lo)}, 16, {vr(src)}")
    a(f"v_and_b32 {vr(hi)}, 0xffff0000, {vr(src)}")


def gen_p0(a):
    XL = 65536
    header(a, "p0_kernel")
    a("s_cmp_ge_u32 s2, 464")
    a("s_cbranch_scc1 p0_end")
    a("s_load_dwordx4 s[4:7], s[0:1], 0")
    a("s_load_dwordx2 s[8:9], s[0:1], 16")
    a("s_load_dwordx4 s[48:51], s[0:1], 32")
    a("s_load_dwordx2 s[10:11], s[0:1], 48")
    a("s_load_dwordx2 s[12:13], s[0:1], 72")
    a("v_mov_b32 v11, v0")
    lane_setup(a)
    a("v_lshrrev_b32 v3, 3, v0")
    a("v_and_b32 v4, 7, v0")
    a("s_waitcnt lgkmcnt(0)")
    srd_off(a, 24, 12, WS_AUX, AUX_SIZE)
    srd(a, 40, "s4", "s5", 4 * MB)
    srd_off(a, 44, 12, WS_XF, 4 * MB)
    a("s_cmp_lt_u32 s2, 256")
    a("s_cselect_b32 s42, s42, 0")
    a("s_cselect_b32 s46, s46, 0")
    a("s_lshl_b32 s3, s2, 3")
    a("v_add_u32 v5, s3, v3")
    a(f"s_lshl_b32 s39, {sr(S_WAVE)}, 5")
    a("v_add_u32 v6, s39, v4")
    a("v_lshlrev_b32 v7, 11, v5")
    a("v_lshl_add_u32 v7, v6, 4, v7")
    for i in range(4):
        a(f"buffer_load_dwordx4 {vr(16+4*i,4)}, v7, s[40:43], 0 offen offset:{128*i} nt")
    a("s_cmp_lt_u32 s2, 224")
    a("s_cbranch_scc0 p0_t1")
    a("s_lshr_b32 s33, s2, 2")
    a("s_and_b32 s34, s2, 3")
    a("s_mov_b32 s16, s48")
    a("s_mov_b32 s17, s49")
    a("s_mov_b32 s20, s50")
    a("s_mov_b32 s21, s51")
    a("s_movk_i32 s35, 7168")
    a(f"s_mov_b32 s18, {1024*7168}")
    a("s_movk_i32 s38, 7168")
    a("s_lshl_b32 s56, s33, 7")
    a("s_lshl_b32 s57, s33, 2")
    for t in range(4):
        a(f"s_add_u32 s39, s57, {t}")
        a("s_mul_i32 s58, s39, 9363")
        a("s_lshr_b32 s58, s58, 16")
        a(f"s_mul_i32 s58, s58, {64*7 - 7}")
        a("s_add_u32 s58, s58, s39")
        a("s_lshl_b32 s58, s58, 10")
        a(f"s_add_u32 {sr(52+t)}, s58, {WS_W3 - WS_W1}")
    a("s_add_u32 s57, s57, 96")
    a("s_branch p0_go")
    a("p0_t1:")
    a("s_cmp_lt_u32 s2, 320")
    a("s_cbranch_scc0 p0_t2")
    a("s_sub_u32 s39, s2, 224")
    a("s_lshr_b32 s33, s39, 2")
    a("s_and_b32 s34, s39, 3")
    a("s_mov_b32 s16, s6")
    a("s_mov_b32 s17, s7")
    a("s_mov_b32 s20, s6")
    a("s_mov_b32 s21, s7")
    a("s_movk_i32 s35, 6144")
    a(f"s_mov_b32 s18, {1024*6144}")
    a("s_movk_i32 s38, 3072")
    a("s_lshl_b32 s56, s33, 8")
    a("s_lshl_b32 s57, s33, 2")
    a("s_lshr_b32 s58, s57, 5")
    a("s_and_b32 s39, s57, 31")
    a("s_mul_i32 s39, s39, 192")
    a("s_add_u32 s39, s39, s58")
    a("s_lshl_b32 s52, s39, 10")
    for t in range(1, 4):
        a(f"s_add_u32 {sr(52+t)}, s52, {t*192*1024}")
    a("s_branch p0_go")
    a("p0_t2:")
    a("s_movk_i32 s35, 2048")
    a("s_movk_i32 s38, 2048")
    a("s_cmp_lt_u32 s2, 432")
    a("s_cselect_b32 s16, s10, s8")
    a("s_cselect_b32 s17, s11, s9")
    a("s_mov_b32 s20, s16")
    a("s_mov_b32 s21, s17")
    a(f"s_mov_b32 s18, {1024*2048}")
    a(f"s_cselect_b32 s18, {3584*2048}, s18")
    a("s_movk_i32 s39, 432")
    a("s_cselect_b32 s39, 320, s39")
    a(f"s_mov_b32 s58, {64*2048}")
    a(f"s_cselect_b32 s58, {224*2048}, s58")
    a(f"s_mov_b32 s59, {WS_W2 - WS_W1}")
    a(f"s_cselect_b32 s59, {WS_W4 - WS_W1}, s59")
    a("s_sub_u32 s39, s2, s39")
    a("s_and_b32 s33, s39, 7")
    a("s_lshr_b32 s34, s39, 3")
    a("s_lshl_b32 s56, s33, 8")
    a("s_lshl_b32 s39, s33, 1")
    a("s_mul_i32 s39, s39, s58")
    a("s_add_u32 s52, s39, s59")
    a("s_add_u32 s53, s52, 1024")
    a("s_add_u32 s54, s52, s58")
    a("s_add_u32 s55, s54, 1024")
    a("s_mov_b32 s57, 0")
    a("p0_go:")
    a("s_mov_b32 s19, 0x20000")
    a("s_mov_b32 s22, s18")
    a("s_mov_b32 s23, 0x20000")
    srd_off(a, 28, 12, WS_W1, 30 * MB)
    a("v_lshrrev_b32 v2, 6, v11")
    a("s_nop 0")
    a("v_readfirstlane_b32 s32, v2")
    a("s_lshl_b32 s58, s32, 14")
    a("v_lshlrev_b32 v8, 11, v15")
    a("v_lshl_add_u32 v8, v13, 3, v8")
    a("v_add_u32 v8, s58, v8")
    a("s_cmp_lt_u32 s2, 224")
    a("s_cbranch_scc0 p0_plain")
    a("v_mul_lo_u32 v32, v3, s35")
    a("v_bfe_u32 v9, v0, 1, 2")
    a("v_xor_b32 v9, v9, v14")
    a("v_and_b32 v10, 1, v0")
    a("v_lshl_add_u32 v32, v10, 4, v32")
    a("v_xor_b32 v10, 2, v9")
    a("v_lshl_add_u32 v33, v10, 5, v32")
    a("v_lshl_add_u32 v32, v9, 5, v32")
    a("v_lshl_add_u32 v8, v14, 10, v8")
    a("v_lshl_add_u32 v8, v12, 7, v8")
    a("v_lshrrev_b32 v9, 1, v12")
    a("v_lshl_add_u32 v9, v14, 1, v9")
    for t in range(4):
        a(f"v_xor_b32 v10, {t}, v9")
        a(f"v_lshl_add_u32 {vr(112+2*t)}, v10, 5, v8")
        a(f"v_add_u32 {vr(113+2*t)}, 512, {vr(112+2*t)}")
    a("s_branch p0_dma")
    a("p0_plain:")
    a("v_lshrrev_b32 v9, 4, v0")
    a("v_mul_lo_u32 v32, v9, s35")
    a("v_xor_b32 v9, v9, v12")
    a("v_lshl_add_u32 v32, v9, 6, v32")
    a("v_and_b32 v10, 3, v0")
    a("v_lshl_add_u32 v32, v10, 4, v32")
    a("s_lshl_b32 s39, s35, 2")
    a("v_add_u32 v33, s39, v32")
    a("v_lshl_add_u32 v8, v14, 5, v8")
    a("v_lshl_add_u32 v8, v12, 8, v8")
    for t in range(4):
        a(f"v_xor_b32 v10, {t}, v12")
        a(f"v_lshl_add_u32 {vr(112+2*t)}, v10, 6, v8")
        a(f"v_add_u32 {vr(113+2*t)}, 1024, {vr(112+2*t)}")
    a("p0_dma:")
    a("s_lshl_b32 s39, s34, 2")
    a("s_add_u32 s39, s39, s32")
    a("s_lshl_b32 s59, s39, 2")
    a("s_lshl_b32 s39, s39, 6")
    a("s_mul_i32 s39, s39, s35")
    a("s_add_u32 s39, s39, s56")
    a("s_lshl_b32 s35, s35, 3")
    ldf = ['', 'nt'][opt('p0_ld', 1)]
    for i in range(8):
        a(f"s_add_u32 m0, s58, {2048*i}")
        a(f"buffer_load_dwordx4 v32, s[16:19], s39 offen {ldf} lds")
        a(f"s_add_u32 m0, s58, {2048*i + 1024}")
        a(f"buffer_load_dwordx4 v33, s[20:23], s39 offen {ldf} lds")
        a("s_add_u32 s39, s39, s35")
    for t in range(4):
        a(f"v_mov_b32 {vr(40+t)}, 0")
    a("s_mul_i32 s59, s59, s38")
    for t in range(4):
        a(f"s_add_u32 {sr(52+t)}, {sr(52+t)}, s59")
    a("v_mov_b32 v38, 0x3f803f80")
    a("v_lshrrev_b32 v8, 5, v5")
    a("v_lshlrev_b32 v8, 16, v8")
    a("v_and_b32 v9, 31, v5")
    a("v_lshl_add_u32 v8, v9, 4, v8")
    a("v_lshl_add_u32 v8, v6, 9, v8")
    a("v_mov_b32 v44, 0")
    a("v_mov_b32 v45, 0")
    a("s_waitcnt vmcnt(16)")
    a("s_movk_i32 s15, 0x1000")
    for i in range(4):
        a(f"s_mul_i32 s14, s15, {i}")
        a(f"buffer_store_dwordx4 {vr(16+4*i,4)}, v8, s[44:47], s14 offen sc1")
    for i in range(16):
        a(f"v_dot2_f32_bf16 v44, {vr(16+i)}, v38, v44")
        a(f"v_dot2_f32_bf16 v45, {vr(16+i)}, {vr(16+i)}, v45")
    a("v_lshlrev_b32 v9, 7, v3")
    a("s_lshl_b32 s39, s32, 5")
    a(f"s_add_u32 s39, s39, {XL}")
    a("v_add_u32 v9, s39, v9")
    a("v_lshl_add_u32 v9, v4, 2, v9")
    a("s_nop 1")
    a("ds_write_b32 v9, v44")
    a("ds_write_b32 v9, v45 offset:1024")
    for s_ in range(4):
        a(f"s_waitcnt vmcnt({(12 - 4*s_) + 4 + (0 if opt('p0_nostore', 0) else 4*s_)})")
        for t in range(4):
            for rd in range(2):
                a(f"ds_read_b64_tr_b16 {vr(48+16*s_+4*t+2*rd,2)}, {vr(112+2*t+rd)} offset:{4096*s_}")
        a("s_waitcnt lgkmcnt(0)")
        for t in range(4):
            if not opt("p0_nostore", 0):
                a(f"buffer_store_dwordx4 {vr(48+16*s_+4*t,4)}, {vr(V_L16)}, s[28:31], {sr(52+t)} offen {['','sc1','nt','sc1 nt'][opt('p0_st',1)]}")
            a(f"s_add_u32 {sr(52+t)}, {sr(52+t)}, s38")
        for q in range(4):
            for t in range(4):
                a(f"v_dot2_f32_bf16 {vr(40+t)}, {vr(48+16*s_+4*t+q)}, v38, {vr(40+t)}")
    a("v_lshlrev_b32 v9, 2, v0")
    a("s_lshl_b32 s39, s32, 10")
    a(f"s_add_u32 s39, s39, {XL + 2048}")
    a("v_add_u32 v9, s39, v9")
    a("s_nop 1")
    for t in range(4):
        a(f"ds_write_b32 v9, {vr(40+t)} offset:{256*t}")
    a("s_waitcnt lgkmcnt(0)")
    a("s_barrier")
    a("s_cmp_ge_u32 s32, 2")
    a("s_cbranch_scc1 p0_x2")
    a("s_cmp_ge_u32 s2, 320")
    a("s_cbranch_scc1 p0_end")
    a("v_lshrrev_b32 v9, 5, v11")
    a("v_lshlrev_b32 v9, 8, v9")
    a("v_and_b32 v10, 31, v11")
    a("v_lshl_add_u32 v9, v10, 2, v9")
    a(f"v_add_u32 v9, {XL + 2048}, v9")
    for q in range(8):
        a(f"ds_read_b32 {vr(48+q)}, v9 offset:{1024*(q>>1) + 128*(q&1)}")
    a("s_waitcnt lgkmcnt(0)")
    for q in range(1, 8):
        a(f"v_add_f32 v48, v48, {vr(48+q)}")
    a(f"s_mul_i32 s39, s34, {CS_PART}")
    a("s_lshl_b32 s57, s57, 7")
    a("s_add_u32 s39, s39, s57")
    a(f"s_add_u32 s39, s39, {AUX_CS}")
    a("v_lshlrev_b32 v9, 2, v11")
    a("buffer_store_dword v48, v9, s[24:27], s39 offen")
    a("s_endpgm")
    a("p0_x2:")
    a("s_cmp_ge_u32 s2, 256")
    a("s_cbranch_scc1 p0_end")
    a("s_cmp_eq_u32 s32, 3")
    a("s_cbranch_scc1 p0_x3")
    a("s_mov_b64 exec, 0xffff")
    a("v_lshlrev_b32 v9, 7, v0")
    a(f"v_add_u32 v9, {XL}, v9")
    for i in range(8):
        a(f"ds_read_b128 {vr(48+4*i,4)}, v9 offset:{16*i}")
    a("s_waitcnt lgkmcnt(0)")
    for i in range(1, 32):
        a(f"v_add_f32 v48, v48, {vr(48+i)}")
    a("v_lshlrev_b32 v9, 13, v3")
    a("v_add_u32 v10, s3, v4")
    a("v_lshl_add_u32 v9, v10, 2, v9")
    a(f"buffer_store_dword v48, v9, s[24:27], 0 offen offset:{AUX_ST}")
    a("s_endpgm")
    a("p0_x3:")
    a("s_mul_i32 s14, s2, 192")
    a(f"s_add_u32 s14, s14, {AUX_ST + 16384}")
    a("v_lshlrev_b32 v9, 2, v0")
    a("v_mov_b32 v10, 0")
    a("s_mov_b32 exec_hi, 0xffff")
    a("buffer_store_dword v10, v9, s[24:27], s14 offen sc1")
    a("s_cmp_ge_u32 s2, 160")
    a("s_cbranch_scc1 p0_end")
    a("s_lshl_b32 s14, s2, 9")
    a(f"s_add_u32 s14, s14, {AUX_CNT}")
    a("v_lshlrev_b32 v9, 8, v0")
    a("s_mov_b64 exec, 3")
    a("buffer_store_dword v10, v9, s[24:27], s14 offen sc1")
    a("p0_end:")
    a("s_endpgm")
    return [("p0_kernel", 120, 120)], XL + 2048 + 4096


S_X = [8, 12]
S_W = 16
S_OUT = 20
S_AUX = 24
S_WAVE, S_XO, S_WK, S_CUR, S_OTH, S_DELTA, S_CNT = 30, 33, 34, 35, 36, 37, 38
S_MT8, S_NT32, S_MT16, S_NT16 = 48, 49, 50, 51
S_R64, S_M32 = 31, 32
S_RES = 56
S_LCNT = 28
V_L16 = 1
V_DMA = 2
V_RD = 10
ACC = 32
RB = 4096
CS_LDS = 0
ST_LDS = 1024
KV_LDS = RB + 3 * 32768
AT_LDS = RB + 4 * 32768
LDS_TOTAL = AT_LDS + 4096
SPIN = 200000
uid = [0]


class Cfg:
    pass


def acc_reg(c, ms, j):
    return ACC + (ms * c.nw + j) * 16


def lane_setup(a):
    a("v_lshrrev_b32 v2, 6, v0")
    a("v_and_b32 v0, 63, v0")
    a(f"v_readfirstlane_b32 {sr(S_WAVE)}, v2")
    a(f"v_lshlrev_b32 {vr(V_L16)}, 4, v0")
    a("v_bfe_u32 v12, v0, 2, 2")
    a("v_and_b32 v13, 1, v0")
    a("v_lshlrev_b32 v13, 1, v13")
    a("v_bfe_u32 v14, v0, 1, 1")
    a("v_or_b32 v13, v13, v14")
    a("v_bfe_u32 v14, v0, 4, 1")
    a("v_lshrrev_b32 v15, 5, v0")


def ring_vregs(a, c):
    a(f"v_add_u32 {vr(V_RD)}, {RB}, {vr(V_L16)}")
    a(f"s_mul_i32 s39, {sr(S_WAVE)}, {c.ndma * 1024}")
    a(f"v_add_u32 {vr(V_DMA)}, s39, {vr(V_L16)}")
    a(f"v_add_u32 {vr(V_DMA+1)}, 0x1000, {vr(V_DMA)}")


def dma(i):
    return f"buffer_load_dwordx4 {vr(V_DMA + i // 4)}, {sr(S_W, 4)}, {sr(S_WK)} offen offset:{(i % 4) * 1024} lds"


def prefill(a, c):
    sb = c.sps * c.nw * 1024
    ring_vregs(a, c)
    a(f"s_add_u32 {sr(S_CUR)}, s39, {RB}")
    a(f"s_add_u32 {sr(S_OTH)}, {sr(S_CUR)}, {2*sb}")
    a(f"s_mov_b32 {sr(S_DELTA)}, {2*sb}")
    a(f"s_mov_b32 {sr(S_XO)}, 0")
    a(f"s_mov_b32 {sr(S_WK)}, 0")
    for st in range(3):
        for i in range(c.ndma):
            if i % 4 == 0:
                a(f"s_add_u32 m0, {sr(S_CUR)}, {st * sb + i * 1024}")
            a(dma(i))
        a(f"s_add_u32 {sr(S_WK)}, {sr(S_WK)}, {sb}")


def zero_acc(a, c):
    for r in range(c.mw * c.nw * 16):
        a(f"v_mov_b32 {vr(ACC + r)}, 0")


def gemm(a, c, first_loads=None, after_first=None, barrier=False):
    mw, nw, G, sps, RX = c.mw, c.nw, c.G, c.sps, c.RX
    sb = sps * nw * 1024
    assert c.ndma * 4 == sps * nw
    R = 2 * sps
    assert R % RX == 0 and RX % G == 0 and RX % 4 == 0
    NG = R // G
    GPS = sps // G
    WF = RX * mw * 4
    c.nagpr = WF + 2 * G * nw * 4

    def xreg(slot, ms):
        return (slot * mw + ms) * 4

    def wreg(par, e, j):
        return WF + ((par * G + e) * nw + j) * 4

    def reads(gi):
        out = []
        for e in range(G):
            stage, s = divmod(gi * G + e, sps)
            for j in range(nw):
                off = stage * sb + (s * nw + j) * 1024
                assert off < 65536
                out.append(("i", f"ds_read_b128 {ar(wreg(gi & 1, e, j), 4)}, {vr(V_RD)} offset:{off}"))
        return out

    ndg = max(GPS - 1, 1)
    dma_of = [[] for _ in range(GPS)]
    for i in range(c.ndma):
        dma_of[i * ndg // c.ndma].append(i)

    def xload(step_abs, rel):
        out = []
        if rel % 4 == 0 and step_abs != 0:
            out.append(("i", f"s_add_u32 {sr(S_XO)}, {sr(S_XO)}, 0x1000"))
        for ms in range(mw):
            out.append(("v", f"buffer_load_dwordx4 {ar(xreg(rel % RX, ms), 4)}, {vr(V_L16)}, {sr(S_X[ms], 4)}, "
                             f"{sr(S_XO)} offen offset:{(rel % 4) * 1024}", ("x", step_abs)))
        return out

    def vm_items(gi, it):
        out = []
        stage_l, gs = divmod(gi, GPS)
        for e in range(G):
            rel = (gi - 1) * G + RX + e
            out += xload(it * R + rel, rel)
        tgt = 2 * it + stage_l + 3
        base, par = (S_OTH, 1) if stage_l == 0 else (S_CUR, 0)
        for i in dma_of[gs]:
            if i % 4 == 0:
                out.append(("i", f"s_add_u32 m0, {sr(base)}, {par * sb + i * 1024}"))
            out.append(("v", dma(i), ("w", tgt)))
            if i == c.ndma - 1:
                out.append(("i", f"s_add_u32 {sr(S_WK)}, {sr(S_WK)}, {sb}"))
        return out

    def body(it):
        out = []
        for gi in range(NG):
            stage_l, gs = divmod(gi, GPS)
            req = [("x", it * R + gi * G + e) for e in range(G)]
            last = gs == GPS - 1
            if last:
                req.append(("w", 2 * it + stage_l + 1))
            out.append(("wait", req, gi))
            if last:
                out.append(("i", "s_barrier"))
            mf = []
            for e in range(G):
                for j in range(nw):
                    for ms in range(mw):
                        d = vr(acc_reg(c, ms, j), 16)
                        w = ar(wreg(gi & 1, e, j), 4)
                        x = ar(xreg((gi * G + e) % RX, ms), 4)
                        A, B = (x, w) if c.noswap(j) else (w, x)
                        mf.append(("i", f"v_mfma_f32_32x32x16_bf16 {d}, {A}, {B}, {d}"))
            pre, post = [], []
            if gi == NG - 1:
                pre.append(("i", f"v_add_u32 {vr(V_RD)}, {sr(S_DELTA)}, {vr(V_RD)}"))
                post = [("i", f"s_sub_u32 {sr(S_DELTA)}, 0, {sr(S_DELTA)}"),
                        ("i", f"s_mov_b32 s39, {sr(S_CUR)}"),
                        ("i", f"s_mov_b32 {sr(S_CUR)}, {sr(S_OTH)}"),
                        ("i", f"s_mov_b32 {sr(S_OTH)}, s39"),
                        ("i", f"s_sub_u32 {sr(S_CNT)}, {sr(S_CNT)}, 1"),
                        ("i", f"s_cmp_lg_u32 {sr(S_CNT)}, 0")]
            rds = reads((gi + 1) % NG)
            vms = vm_items(gi, it)
            n = len(mf)
            gaps = [[] for _ in range(n)]
            rpg = c.reads_per_gap
            gaps[0] += pre
            for i, r in enumerate(rds):
                gaps[min(i // rpg, n - 1)].append(r)
            units, cur = [], []
            for itx in vms:
                cur.append(itx)
                if itx[0] == "v":
                    units.append(cur)
                    cur = []
            if cur:
                units[-1] += cur
            first = min((len(rds) + rpg - 1) // rpg, n - 1) if c.vm_late else 0
            avail = n - first
            for i, u in enumerate(units):
                gaps[first + (i * avail // len(units))] += u
            gaps[n - 1] += post
            for m, g in zip(mf, gaps):
                out.append(m)
                out += g
        return out

    pro = []
    for s in range(RX - G):
        pro += xload(s, s)
    nx = sum(1 for x in pro if x[0] == "v")
    seq = list(pro)
    for it in range(4):
        seq += body(it)
    waitn = {}
    issued = []
    for itx in seq:
        if itx[0] == "v":
            issued.append(itx[2])
        elif itx[0] == "wait":
            n = 63
            for r in itx[1]:
                idx = [i for i, t in enumerate(issued) if t == r]
                if idx:
                    n = min(n, len(issued) - 1 - max(idx))
                else:
                    assert r[0] == "w" and r[1] < 3
            waitn.setdefault(itx[2], []).append(n)
    print(c.name, "waits", {k: (min(v), max(v)) for k, v in waitn.items()}, file=sys.stderr)

    def emit(items):
        for itx in items:
            if itx[0] in ("i", "v"):
                a(itx[1])
            else:
                a(f"s_waitcnt vmcnt({min(waitn[itx[2]])}) lgkmcnt(0)")

    if first_loads:
        first_loads()
    emit(pro)
    if barrier:
        a(f"s_waitcnt vmcnt({nx})")
        a("s_barrier")
    emit(reads(0))
    if after_first:
        a(f"s_waitcnt vmcnt({nx})")
        after_first()
    stamp(a, 2)
    a(".p2align 3")
    a(f"{c.name}_loop:")
    emit(body(0))
    a(f"s_cbranch_scc1 {c.name}_loop")
    stamp(a, 3)
    a("s_waitcnt vmcnt(0) lgkmcnt(0)")
    a("s_barrier")


def arrive(a, soff):
    uid[0] += 1
    a("s_waitcnt vmcnt(0)")
    a("s_barrier")
    a(f"s_cmp_lg_u32 {sr(S_WAVE)}, 0")
    a(f"s_cbranch_scc1 arr{uid[0]}")
    a("v_mov_b32 v8, 0")
    a("v_mov_b32 v9, 1")
    a("s_mov_b64 exec, 1")
    a(f"buffer_atomic_add v9, v8, {sr(S_AUX,4)}, {soff} offen sc1")
    a("s_mov_b64 exec, -1")
    a(f"arr{uid[0]}:")


def wait(a, soff, nshard):
    uid[0] += 1
    u = uid[0]
    a(f"s_cmp_lg_u32 {sr(S_WAVE)}, 0")
    a(f"s_cbranch_scc1 wt{u}_go")
    a(f"v_and_b32 v8, {nshard-1}, v0")
    a("v_lshlrev_b32 v8, 8, v8")
    a(f"s_mov_b64 exec, {(1 << nshard) - 1}")
    a(f"s_mov_b32 s40, {SPIN}")
    a(f"wt{u}_poll:")
    a(f"buffer_load_dword v9, v8, {sr(S_AUX,4)}, {soff} offen sc1")
    a("s_waitcnt vmcnt(0)")
    a("v_cmp_gt_u32 vcc, 8, v9")
    a("s_nop 4")
    a(f"s_cbranch_vccz wt{u}_ok")
    a(f"s_sleep {opt('sleep', 1)}")
    a("s_sub_u32 s40, s40, 1")
    a("s_cmp_lg_u32 s40, 0")
    a(f"s_cbranch_scc1 wt{u}_poll")
    a(f"wt{u}_ok:")
    a("s_mov_b64 exec, -1")
    a(f"wt{u}_go:")
    a("s_waitcnt lgkmcnt(0)")
    a("s_barrier")


def cnt_off(a, dst, kind, group, shard=None, gshift=0):
    if gshift:
        a(f"s_lshr_b32 {dst}, {sr(group)}, {gshift}")
        a(f"s_lshl_b32 {dst}, {dst}, 10")
    else:
        a(f"s_lshl_b32 {dst}, {sr(group)}, 10")
    if shard is not None:
        a(f"s_and_b32 s41, {sr(shard)}, 3")
        a("s_lshl_b32 s41, s41, 8")
        a(f"s_add_u32 {dst}, {dst}, s41")
    a(f"s_add_u32 {dst}, {dst}, {kind * 8192 if isinstance(kind, int) else kind}")
    a(f"s_add_u32 {dst}, {dst}, {sr(S_LCNT)}")


def cs_loads(a, soff):
    for p in range(4):
        a(f"buffer_load_dword {vr(26+p)}, v25, {sr(S_AUX,4)}, {soff} offen")
        if p < 3:
            a(f"s_add_u32 {soff}, {soff}, {CS_PART}")


def cs_finish(a):
    a("v_add_f32 v26, v26, v27")
    a("v_add_f32 v28, v28, v29")
    a("v_add_f32 v26, v26, v28")
    a("v_lshlrev_b32 v27, 2, v0")
    a(f"s_lshl_b32 s39, {sr(S_WAVE)}, 8")
    a("v_add_u32 v27, s39, v27")
    a("ds_write_b32 v27, v26")


def ln_stats(a, S, Q, t):
    a(f"v_mul_f32 {vr(S)}, {INV1024}, {vr(S)}")
    a(f"v_mul_f32 {vr(Q)}, {INV1024}, {vr(Q)}")
    a(f"v_fma_f32 {vr(Q)}, -{vr(S)}, {vr(S)}, {vr(Q)}")
    a(f"v_max_f32 {vr(Q)}, 0, {vr(Q)}")
    a(f"v_cvt_pk_bf16_f32 {vr(t)}, {vr(S)}, {vr(Q)}")
    a(f"v_lshlrev_b32 {vr(S)}, 16, {vr(t)}")
    a(f"v_and_b32 {vr(Q)}, 0xffff0000, {vr(t)}")
    a(f"v_add_f32 {vr(Q)}, {EPS5}, {vr(Q)}")
    a(f"v_cvt_pk_bf16_f32 {vr(t)}, {vr(Q)}, {vr(Q)}")
    a(f"v_lshlrev_b32 {vr(Q)}, 16, {vr(t)}")
    a(f"v_sqrt_f32 {vr(Q)}, {vr(Q)}")
    a(f"v_cvt_pk_bf16_f32 {vr(t)}, {vr(Q)}, {vr(Q)}")
    a(f"v_lshlrev_b32 {vr(Q)}, 16, {vr(t)}")


def x_srds_256(a, xi):
    a(f"s_lshl_b32 s39, {sr(S_R64)}, 16")
    a(f"s_lshl_b32 s40, {xi}, 22")
    a("s_add_u32 s39, s39, s40")
    srd_off(a, S_X[0], 6, "s39", 65536)
    a("s_add_u32 s39, s39, 0x10000")
    srd_off(a, S_X[1], 6, "s39", 65536)


def stats_addr(a, xi):
    a("v_and_b32 v24, 31, v0")
    a("v_lshlrev_b32 v24, 2, v24")
    a(f"s_lshl_b32 s46, {sr(S_R64)}, 7")
    a(f"s_lshl_b32 s47, {xi}, 14")
    a("s_add_u32 s46, s46, s47")
    a("s_add_u32 s47, s46, 0x2000")


def stats_loads(a):
    a(f"buffer_load_dword v16, v24, {sr(S_AUX,4)}, s46 offen")
    a(f"buffer_load_dword v17, v24, {sr(S_AUX,4)}, s47 offen")
    a(f"buffer_load_dword v20, v24, {sr(S_AUX,4)}, s46 offen offset:128")
    a(f"buffer_load_dword v21, v24, {sr(S_AUX,4)}, s47 offen offset:128")


def phi(a, regs, t0):
    n = len(regs)
    for i in range(0, n, 2):
        a(f"v_pk_mul_f32 {vr(t0+i,2)}, {vr(regs[i],2)}, s[52:53]")
    for i in range(n):
        a(f"v_exp_f32 {vr(t0+i)}, {vr(t0+i)} clamp")
    for i in range(n):
        a(f"v_max_f32 {vr(regs[i])}, {EPS6}, {vr(regs[i])}")
    for i in range(0, n, 2):
        a(f"v_pk_add_f32 {vr(regs[i],2)}, {vr(regs[i],2)}, {vr(t0+i,2)}")


def mk(name, mw, nw, sps, G, RX, rpg, late, noswap):
    c = Cfg()
    c.name, c.mw, c.nw, c.sps = name, mw, nw, sps
    c.G = opt(name + "_G", G)
    c.RX = opt(name + "_RX", RX)
    c.ndma = sps * nw // 4
    c.reads_per_gap = opt(name + "_rpg", rpg)
    c.vm_late = opt(name + "_late", late)
    c.noswap = noswap
    return c


def w_srd_g1(a):
    a(f"s_mul_i32 s39, {sr(S_NT32)}, {64*3072}")
    a(f"s_add_u32 s39, s39, {WS_W1}")
    srd_off(a, S_W, 6, "s39", 64 * 3072)


def w_srd_g3(a):
    a(f"s_mul_i32 s39, {sr(S_NT32)}, {64*7168}")
    a(f"s_add_u32 s39, s39, {WS_W3}")
    srd_off(a, S_W, 6, "s39", 64 * 7168)


def w_srd_g24(a, down):
    n = (224 if down else 64) * 2048
    a(f"s_mul_i32 s39, {sr(S_NT16)}, {n}")
    a(f"s_add_u32 s39, s39, {WS_W4 if down else WS_W2}")
    srd_off(a, S_W, 6, "s39", n)


def gen_main(a):
    c1 = mk("g1", 2, 3, 8, 2, 8, 1, 1, lambda j: j > 0)
    c3 = mk("g3", 2, 7, 4, 1, 8, 1, 1, lambda j: False)
    c2 = mk("g24", 1, 2, 16, 4, 16, 2, 0, lambda j: False)
    P = "op_sel_hi"
    header(a, "main_kernel")
    a("s_cmp_ge_u32 s2, 256")
    a("s_cbranch_scc1 main_end")
    stamp(a, 0)
    a("s_load_dwordx2 s[4:5], s[0:1], 56")
    a("s_load_dwordx2 s[6:7], s[0:1], 72")
    lane_setup(a)
    a("s_and_b32 s39, s2, 7")
    a("s_lshr_b32 s40, s2, 3")
    a("s_and_b32 s42, s40, 3")
    a("s_lshr_b32 s43, s40, 2")
    a("s_and_b32 s41, s39, 1")
    a("s_lshl_b32 s41, s41, 2")
    a(f"s_add_u32 {sr(S_MT8)}, s41, s42")
    a("s_lshr_b32 s41, s39, 1")
    a("s_lshl_b32 s41, s41, 3")
    a(f"s_add_u32 {sr(S_NT32)}, s41, s43")
    a("s_and_b32 s41, s39, 3")
    a("s_lshl_b32 s41, s41, 2")
    a(f"s_add_u32 {sr(S_MT16)}, s41, s42")
    a("s_lshr_b32 s41, s39, 2")
    a("s_lshl_b32 s41, s41, 3")
    a(f"s_add_u32 {sr(S_NT16)}, s41, s43")
    a(f"s_lshl_b32 {sr(S_R64)}, {sr(S_MT8)}, 3")
    a(f"s_lshl_b32 s39, {sr(S_WAVE)}, 1")
    a(f"s_add_u32 {sr(S_R64)}, {sr(S_R64)}, s39")
    a(f"s_lshl_b32 {sr(S_M32)}, {sr(S_MT16)}, 2")
    a(f"s_add_u32 {sr(S_M32)}, {sr(S_M32)}, {sr(S_WAVE)}")
    a(f"s_mov_b32 s52, {LOG2E}")
    a(f"s_mov_b32 s53, {LOG2E}")
    a(f"s_mov_b32 s54, {EPS6}")
    a(f"s_mov_b32 s55, {EPS6}")
    a("s_mov_b32 s3, 0")
    a(f"s_mov_b32 {sr(S_LCNT)}, {AUX_CNT}")
    a("s_waitcnt lgkmcnt(0)")
    srd_off(a, S_AUX, 6, WS_AUX, AUX_SIZE)
    w_srd_g1(a)
    prefill(a, c1)

    a("ph_g1:")
    ring_vregs(a, c1)
    x_srds_256(a, "s3")
    stats_addr(a, "s3")
    a("v_lshl_add_u32 v25, v15, 12, v24")
    a(f"s_lshl_b32 s39, {sr(S_NT32)}, 7")
    a(f"s_lshl_b32 s40, {sr(S_WAVE)}, 13")
    a("s_add_u32 s39, s39, s40")
    a(f"s_add_u32 s39, s39, {AUX_CS}")
    cs_loads(a, "s39")
    a(f"s_mov_b32 {sr(S_CNT)}, 4")
    zero_acc(a, c1)
    a("s_cmp_eq_u32 s3, 0")
    a("s_cbranch_scc1 g1_go")
    cnt_off(a, "s39", K_X2, S_MT8)
    wait(a, "s39", 4)
    a(f"s_add_u32 {sr(S_LCNT)}, {sr(S_LCNT)}, {5*8192}")
    a("g1_go:")
    stamp(a, 1)

    def g1_after():
        cs_finish(a)
        a(f"s_lshl_b32 s39, {sr(S_WAVE)}, 9")
        a("v_add_u32 v25, s39, v24")
        for ms, b in enumerate((16, 20)):
            ln_stats(a, b, b + 1, 26)
            a(f"v_rcp_f32 {vr(b+2)}, {vr(b+1)}")
            a(f"v_sub_f32 {vr(b)}, 0, {vr(b)}")
            a(f"ds_write_b32 v25, {vr(b)} offset:{ST_LDS + 128*ms}")
            a(f"ds_write_b32 v25, {vr(b+2)} offset:{ST_LDS + 256 + 128*ms}")

    gemm(a, c1, lambda: stats_loads(a), g1_after, barrier=True)
    w_srd_g24(a, False)
    prefill(a, c2)
    c = c1
    T = 128
    a("v_and_b32 v2, 31, v0")
    a("v_lshlrev_b32 v2, 2, v2")
    a(f"ds_read_b32 v4, v2 offset:{CS_LDS + 128}")
    a(f"ds_read_b32 v6, v2 offset:{CS_LDS + 256}")
    a(f"s_lshl_b32 s39, {sr(S_WAVE)}, 9")
    a("v_lshlrev_b32 v3, 4, v15")
    a("v_add_u32 v3, s39, v3")
    KVA, ZA, ONES = 192, 208, 224
    for i in range(4):
        a(f"v_mov_b32 {vr(ONES+i)}, 0x3f803f80")
    for ms in range(2):
        for rg in range(4):
            a(f"ds_read_b128 {vr(T+4*rg,4)}, v3 offset:{ST_LDS + 128*ms + 32*rg}")
            a(f"ds_read_b128 {vr(T+16+4*rg,4)}, v3 offset:{ST_LDS + 256 + 128*ms + 32*rg}")
        a("s_waitcnt lgkmcnt(0)")
        k = acc_reg(c, ms, 1)
        v = acc_reg(c, ms, 2)
        for p in range(8):
            a(f"v_pk_fma_f32 {vr(k+2*p,2)}, {vr(T+2*p,2)}, v[4:5], {vr(k+2*p,2)} {P}:[1,0,1]")
        for p in range(8):
            a(f"v_pk_fma_f32 {vr(v+2*p,2)}, {vr(T+2*p,2)}, v[6:7], {vr(v+2*p,2)} {P}:[1,0,1]")
        for p in range(8):
            a(f"v_pk_fma_f32 {vr(k+2*p,2)}, {vr(k+2*p,2)}, {vr(T+16+2*p,2)}, s[54:55]")
        for p in range(8):
            a(f"v_pk_mul_f32 {vr(v+2*p,2)}, {vr(v+2*p,2)}, {vr(T+16+2*p,2)}")
        phi(a, list(range(k, k + 16)), T + 32)
        for p in range(8):
            a(f"v_cvt_pk_bf16_f32 {vr(k+p)}, {vr(k+2*p)}, {vr(k+2*p+1)}")
        for p in range(8):
            a(f"v_cvt_pk_bf16_f32 {vr(v+p)}, {vr(v+2*p)}, {vr(v+2*p+1)}")
        for s in range(2):
            first = ms == 0 and s == 0
            a(f"v_mfma_f32_32x32x16_bf16 {vr(KVA,16)}, {vr(k+4*s,4)}, {vr(v+4*s,4)}, {'0' if first else vr(KVA,16)}")
            a(f"v_mfma_f32_32x32x16_bf16 {vr(ZA,16)}, {vr(k+4*s,4)}, {vr(ONES,4)}, {'0' if first else vr(ZA,16)}")
    a("v_lshlrev_b32 v3, 4, v15")
    for rg in range(4):
        a(f"ds_read_b128 {vr(T+4*rg,4)}, v3 offset:{CS_LDS + 32*rg}")
    a(f"s_lshl_b32 s39, {sr(S_WAVE)}, 13")
    a(f"s_add_u32 s39, s39, {KV_LDS}")
    a(f"v_add_u32 v8, s39, {vr(V_L16)}")
    for rg in range(8):
        a(f"ds_write_b128 v8, {vr(KVA+4*rg,4)} offset:{1024*rg}")
    a("s_waitcnt lgkmcnt(0)")
    a("s_barrier")
    a(f"s_lshl_b32 s39, {sr(S_WAVE)}, 10")
    a(f"s_add_u32 s39, s39, {KV_LDS}")
    a(f"v_add_u32 v8, s39, {vr(V_L16)}")
    for w in range(4):
        a(f"ds_read_b128 {vr(KVA+4*w,4)}, v8 offset:{8192*w}")
        a(f"ds_read_b128 {vr(ZA+4*w,4)}, v8 offset:{8192*w + 4096}")
    a("s_lshr_b32 s39, s3, 1")
    a("s_lshl_b32 s39, s39, 5")
    a(f"s_add_u32 s39, s39, {sr(S_NT32)}")
    a("s_lshl_b32 s44, s39, 15")
    a(f"s_lshl_b32 s40, {sr(S_WAVE)}, 10")
    a("s_add_u32 s44, s44, s40")
    a(f"s_add_u32 s44, s44, {AUX_KV}")
    a("s_lshl_b32 s45, s39, 10")
    a(f"s_lshl_b32 s40, {sr(S_WAVE)}, 4")
    a("s_add_u32 s45, s45, s40")
    a(f"s_add_u32 s45, s45, {AUX_Z}")
    a(f"s_lshl_b32 s39, {sr(S_MT8)}, 12")
    a("s_add_u32 s39, s39, s44")
    a(f"s_lshl_b32 s40, {sr(S_MT8)}, 7")
    a("s_add_u32 s40, s40, s45")
    a("v_lshlrev_b32 v3, 6, v15")
    a("s_waitcnt lgkmcnt(0)")
    for base in (KVA, ZA):
        for w in range(1, 4):
            for p in range(2):
                a(f"v_pk_add_f32 {vr(base+2*p,2)}, {vr(base+2*p,2)}, {vr(base+4*w+2*p,2)}")
    a(f"buffer_store_dwordx4 {vr(KVA,4)}, {vr(V_L16)}, {sr(S_AUX,4)}, s39 offen sc1")
    a("s_mov_b32 exec_lo, 1")
    a("s_mov_b32 exec_hi, 1")
    a(f"buffer_store_dwordx4 {vr(ZA,4)}, v3, {sr(S_AUX,4)}, s40 offen sc1")
    a("s_mov_b64 exec, -1")
    stamp(a, 4)

    def q_epi(ms):
        b = 16 + 4 * ms
        q = acc_reg(c, ms, 0)
        for p in range(8):
            a(f"v_pk_fma_f32 {vr(q+2*p,2)}, {vr(b,2)}, {vr(T+2*p,2)}, {vr(q+2*p,2)} {P}:[0,1,1]")
        for p in range(8):
            a(f"v_pk_fma_f32 {vr(q+2*p,2)}, {vr(q+2*p,2)}, {vr(b+2,2)}, s[54:55] {P}:[1,0,1]")
        phi(a, list(range(q, q + 16)), T + 32)
        for p in range(8):
            a(f"v_cvt_pk_bf16_f32 {vr(q+p)}, {vr(q+2*p)}, {vr(q+2*p+1)}")

    q_epi(0)
    a(f"s_lshl_b32 s43, {sr(S_NT32)}, 8")
    a(f"s_add_u32 s43, s43, {sr(S_LCNT)}")
    arrive(a, "s43")
    q_epi(1)
    a(f"s_lshl_b32 s39, {sr(S_R64)}, 16")
    a(f"s_lshl_b32 s40, {sr(S_NT32)}, 11")
    a("s_add_u32 s39, s39, s40")
    a("s_lshl_b32 s40, s3, 21")
    a("s_add_u32 s39, s39, s40")
    a(f"s_add_u32 s39, s39, {WS_O}")
    srd_off(a, S_OUT, 6, "s39", 65536 + 2048)
    a(f"s_lshr_b32 s39, {sr(S_WAVE)}, 1")
    a("s_lshl_b32 s39, s39, 10")
    a(f"s_and_b32 s41, {sr(S_WAVE)}, 1")
    a("s_lshl_b32 s41, s41, 3")
    a("s_add_u32 s39, s39, s41")
    a(f"s_add_u32 s39, s39, {AT_LDS}")
    a(f"v_add_u32 v4, s39, {vr(V_L16)}")
    a(f"v_add_u32 v5, {AT_LDS}, {vr(V_L16)}")
    wait(a, "s43", 1)
    stamp(a, 5)
    for p in range(8):
        a(f"buffer_load_dwordx4 {vr(128+4*p,4)}, {vr(V_L16)}, {sr(S_AUX,4)}, s44 offen")
        a("s_add_u32 s44, s44, 0x1000")
    for p in range(8):
        a(f"buffer_load_dwordx4 {vr(160+4*p,4)}, v3, {sr(S_AUX,4)}, s45 offen offset:{128*p}")
    for base, wn, off in ((128, 8, 0), (160, 0, 2048)):
        a(f"s_waitcnt vmcnt({wn})")
        for p in range(1, 8):
            for h in range(2):
                a(f"v_pk_add_f32 {vr(base+2*h,2)}, {vr(base+2*h,2)}, {vr(base+4*p+2*h,2)}")
        a(f"v_cvt_pk_bf16_f32 {vr(base)}, {vr(base)}, {vr(base+1)}")
        a(f"v_cvt_pk_bf16_f32 {vr(base+1)}, {vr(base+2)}, {vr(base+3)}")
        a(f"ds_write_b64 v4, {vr(base,2)} offset:{off}")
    a("s_waitcnt lgkmcnt(0)")
    a("s_barrier")
    for i in range(4):
        a(f"ds_read_b128 {vr(192+4*i,4)}, v5 offset:{1024*i}")
    a("s_mov_b32 s40, 0x10000")
    a("s_waitcnt lgkmcnt(0)")
    for ms in range(2):
        q = acc_reg(c, ms, 0)
        for qq in range(2):
            d = 128 + 32 * ms + 16 * qq
            a(f"v_mfma_f32_32x32x16_bf16 {vr(d,16)}, {vr(192+8*qq,4)}, {vr(q,4)}, 0")
            a(f"v_mfma_f32_32x32x16_bf16 {vr(d,16)}, {vr(192+8*qq+4,4)}, {vr(q+4,4)}, {vr(d,16)}")
    for ms in range(2):
        d = 128 + 32 * ms
        a(f"v_add_f32 {vr(d+16)}, {EPS6}, {vr(d+16)}")
        a(f"v_rcp_f32 {vr(d+16)}, {vr(d+16)}")
        for p in range(8):
            a(f"v_pk_mul_f32 {vr(d+2*p,2)}, {vr(d+2*p,2)}, {vr(d+16,2)} op_sel_hi:[1,0]")
        for p in range(8):
            a(f"v_cvt_pk_bf16_f32 {vr(d+p)}, {vr(d+2*p)}, {vr(d+2*p+1)}")
        for s in range(2):
            a(f"buffer_store_dwordx4 {vr(d+4*s,4)}, {vr(V_L16)}, {sr(S_OUT,4)}, {['0','s40'][ms]} offen offset:{1024*s} sc1")
    stamp(a, 6)
    cnt_off(a, "s43", K_O, S_MT8, S_NT32)
    arrive(a, "s43")
    stamp(a, 7)
    if opt("stamps", 0):
        a("s_lshl_b32 s78, s3, 1")
        stamp_flush(a, "s78")

    a("ph_g24:")
    stamp(a, 0)
    c = c2
    ring_vregs(a, c)
    a("s_lshr_b32 s42, s3, 1")
    a("s_bitcmp1_b32 s3, 0")
    a(f"s_cselect_b32 {sr(S_CNT)}, 7, 2")
    a("s_mov_b32 s39, 0x10000")
    a(f"s_cselect_b32 s40, {224*1024}, s39")
    a(f"s_mov_b32 s39, {WS_O}")
    a(f"s_cselect_b32 s41, {WS_H}, s39")
    a("s_cselect_b32 s39, 24, 22")
    a(f"s_mov_b32 s43, {K_O * 8192}")
    a(f"s_cselect_b32 s43, {K_H * 8192}, s43")
    a("s_lshl_b32 s42, s42, s39")
    a("s_add_u32 s41, s41, s42")
    a(f"s_mul_i32 s39, {sr(S_M32)}, s40")
    a("s_add_u32 s39, s39, s41")
    srd_off(a, S_X[0], 6, "s39", "s40")
    a(f"s_lshl_b32 s39, {sr(S_M32)}, 16")
    a(f"s_lshl_b32 s40, {sr(S_NT16)}, 12")
    a("s_add_u32 s39, s39, s40")
    a("s_lshl_b32 s40, s3, 22")
    a("s_add_u32 s39, s39, s40")
    srd_off(a, S_RES, 6, "s39", 4096)
    a(f"s_add_u32 s39, s39, {4*MB}")
    srd_off(a, S_OUT, 6, "s39", 4096)
    for b in range(4):
        a(f"buffer_load_dwordx4 {vr(16+4*b,4)}, {vr(V_L16)}, {sr(S_RES,4)}, 0 offen offset:{1024*b}")
    zero_acc(a, c)
    cnt_off(a, "s39", "s43", S_MT16, gshift=1)
    wait(a, "s39", 4)
    stamp(a, 1)
    gemm(a, c)
    a("s_bitcmp1_b32 s3, 0")
    a("s_cbranch_scc1 g24_p1")
    w_srd_g3(a)
    prefill(a, c3)
    a("s_branch g24_epi")
    a("g24_p1:")
    a("s_cmp_eq_u32 s3, 3")
    a("s_cbranch_scc1 g24_epi")
    w_srd_g1(a)
    prefill(a, c1)
    a("g24_epi:")
    a("s_nop 7")
    T = 64
    for i in range(16):
        unpack(a, T + 2 * i, T + 2 * i + 1, 16 + i)
    for i in range(16):
        a(f"v_pk_add_f32 {vr(ACC+2*i,2)}, {vr(ACC+2*i,2)}, {vr(T+2*i,2)}")
    for i in range(16):
        a(f"v_cvt_pk_bf16_f32 {vr(16+i)}, {vr(ACC+2*i)}, {vr(ACC+2*i+1)}")
    a("s_cmp_eq_u32 s3, 3")
    a("s_cbranch_scc1 g24_final")
    for b in range(4):
        a(f"buffer_store_dwordx4 {vr(16+4*b,4)}, {vr(V_L16)}, {sr(S_OUT,4)}, 0 offen offset:{1024*b} sc1")
    a(f"v_pk_mul_f32 v[4:5], {vr(ACC,2)}, {vr(ACC,2)}")
    for i in range(1, 16):
        a(f"v_pk_fma_f32 v[4:5], {vr(ACC+2*i,2)}, {vr(ACC+2*i,2)}, v[4:5]")
        a(f"v_pk_add_f32 {vr(ACC,2)}, {vr(ACC,2)}, {vr(ACC+2*i,2)}")
    a(f"v_add_f32 v2, {vr(ACC)}, {vr(ACC+1)}")
    a("v_add_f32 v3, v4, v5")
    a("v_permlane32_swap_b32 v2, v3")
    a("v_add_f32 v2, v2, v3")
    a("v_and_b32 v3, 31, v0")
    a("v_lshlrev_b32 v3, 2, v3")
    a("v_lshl_add_u32 v3, v15, 13, v3")
    a("s_add_u32 s3, s3, 1")
    a("s_lshl_b32 s39, s3, 14")
    a(f"s_lshl_b32 s40, {sr(S_M32)}, 7")
    a("s_add_u32 s39, s39, s40")
    a(f"buffer_atomic_add_f32 v2, v3, {sr(S_AUX,4)}, s39 offen offset:{AUX_ST} sc1")
    stamp(a, 4)
    a("s_bitcmp1_b32 s3, 0")
    a(f"s_mov_b32 s43, {K_X2 * 8192}")
    a(f"s_cselect_b32 s43, {K_X1 * 8192}, s43")
    cnt_off(a, "s42", "s43", S_MT16, S_NT16, gshift=1)
    arrive(a, "s42")
    stamp(a, 7)
    if opt("stamps", 0):
        a("s_lshl_b32 s78, s3, 1")
        a("s_sub_u32 s78, s78, 1")
        stamp_flush(a, "s78")
        stamp(a, 0)
    a("s_bitcmp1_b32 s3, 0")
    a("s_cbranch_scc0 ph_g1")

    c = c3
    ring_vregs(a, c)
    x_srds_256(a, "s3")
    stats_addr(a, "s3")
    a("v_lshlrev_b32 v25, 2, v0")
    a(f"s_mul_i32 s39, {sr(S_NT32)}, 896")
    a(f"s_lshl_b32 s40, {sr(S_WAVE)}, 8")
    a("s_add_u32 s39, s39, s40")
    a(f"s_add_u32 s39, s39, {AUX_CS + 96*128}")
    cs_loads(a, "s39")
    a(f"s_mov_b32 {sr(S_CNT)}, 8")
    a(f"s_mul_i32 s39, {sr(S_R64)}, {224*1024}")
    a(f"s_mul_i32 s40, {sr(S_NT32)}, 7168")
    a("s_add_u32 s39, s39, s40")
    a("s_lshr_b32 s40, s3, 1")
    a("s_lshl_b32 s40, s40, 24")
    a("s_add_u32 s39, s39, s40")
    a(f"s_add_u32 s39, s39, {WS_H}")
    srd_off(a, S_OUT, 6, "s39", 224 * 1024 + 7168)
    zero_acc(a, c)
    cnt_off(a, "s39", K_X1, S_MT8)
    wait(a, "s39", 4)
    stamp(a, 1)

    def g3_after():
        cs_finish(a)
        for b in (16, 20):
            ln_stats(a, b, b + 1, 24)
            a(f"v_rcp_f32 {vr(b+2)}, {vr(b+1)}")
            a(f"v_sub_f32 {vr(b)}, 0, {vr(b)}")
            a(f"v_mul_f32 {vr(b+1)}, {vr(b+1)}, {vr(b+1)}")
            a(f"v_mul_f32 {vr(b+2)}, {NLOG2E}, {vr(b+2)}")

    gemm(a, c, lambda: stats_loads(a), g3_after)
    w_srd_g24(a, True)
    prefill(a, c2)
    a("v_lshlrev_b32 v10, 4, v15")
    a("s_movk_i32 s40, 0x1000")
    a(f"s_mov_b32 s41, {224*1024}")
    a(f"s_mov_b32 s42, {224*1024 + 4096}")
    for j in range(7):
        a(f"ds_read_b128 v[2:5], v10 offset:{CS_LDS + 128*j}")
        a(f"ds_read_b128 v[6:9], v10 offset:{CS_LDS + 128*j + 32}")
        a(f"ds_read_b128 v[24:27], v10 offset:{CS_LDS + 128*j + 64}")
        a(f"ds_read_b128 v[28:31], v10 offset:{CS_LDS + 128*j + 96}")
        a("s_waitcnt lgkmcnt(0)")
        for ms in range(2):
            b = 16 + 4 * ms
            g = acc_reg(c, ms, j)
            u = g + 8
            for p in range(4):
                a(f"v_pk_fma_f32 {vr(g+2*p,2)}, {vr(b,2)}, {vr(2+2*p,2)}, {vr(g+2*p,2)} {P}:[0,1,1]")
            for p in range(4):
                a(f"v_pk_fma_f32 {vr(u+2*p,2)}, {vr(b,2)}, {vr(24+2*p,2)}, {vr(u+2*p,2)} {P}:[0,1,1]")
            for p in range(4):
                a(f"v_pk_mul_f32 {vr(u+2*p,2)}, {vr(u+2*p,2)}, {vr(g+2*p,2)}")
            for p in range(4):
                a(f"v_pk_mul_f32 {vr(g+2*p,2)}, {vr(g+2*p,2)}, {vr(b+2,2)} {P}:[1,0]")
            for p in range(8):
                a(f"v_exp_f32 {vr(g+p)}, {vr(g+p)}")
            for p in range(4):
                a(f"v_pk_fma_f32 {vr(g+2*p,2)}, {vr(g+2*p,2)}, {vr(b,2)}, {vr(b,2)} op_sel:[0,1,1] {P}:[1,1,1]")
            for p in range(8):
                a(f"v_rcp_f32 {vr(g+p)}, {vr(g+p)}")
            for p in range(4):
                a(f"v_pk_mul_f32 {vr(u+2*p,2)}, {vr(u+2*p,2)}, {vr(g+2*p,2)}")
            for p in range(4):
                a(f"v_cvt_pk_bf16_f32 {vr(g+p)}, {vr(u+2*p)}, {vr(u+2*p+1)}")
            so = [["0", "s40"], ["s41", "s42"]][ms][j >> 2]
            a(f"buffer_store_dwordx4 {vr(g,4)}, {vr(V_L16)}, {sr(S_OUT,4)}, {so} offen offset:{(j&3)*1024} sc1")
    stamp(a, 4)
    cnt_off(a, "s43", K_H, S_MT8, S_NT32)
    arrive(a, "s43")
    stamp(a, 7)
    if opt("stamps", 0):
        a("s_lshl_b32 s78, s3, 1")
        stamp_flush(a, "s78")
    a("s_branch ph_g24")

    a("g24_final:")
    srd(a, S_OUT, "s4", "s5", 4 * MB)
    a("v_and_b32 v3, 31, v0")
    a("v_lshlrev_b32 v3, 11, v3")
    a("v_lshl_add_u32 v3, v15, 4, v3")
    a(f"s_lshl_b32 s39, {sr(S_M32)}, 16")
    a(f"s_lshl_b32 s40, {sr(S_NT16)}, 7")
    a("s_add_u32 s39, s39, s40")
    for b in range(4):
        a(f"buffer_store_dwordx4 {vr(16+4*b,4)}, v3, {sr(S_OUT,4)}, s39 offen offset:{32*b}")
    if opt("stamps", 0):
        stamp(a, 4)
        a("s_waitcnt vmcnt(0)")
        stamp(a, 7)
        stamp_flush(a, 7)
    a("main_end:")
    a("s_endpgm")
    return [("main_kernel", 256 + max(c1.nagpr, c2.nagpr, c3.nagpr), 256)]


def build():
    a = Asm()
    kernels, lds0 = gen_p0(a)
    kernels += gen_main(a)
    launches = [("p0_kernel", 464, lds0), ("main_kernel", 256, LDS_TOTAL)]
    out = "; generated by work/gen2.py\n"
    for n, g, l in launches:
        out += f"; @launch kernel={n} grid=({g},1,1) block=(256,1,1) lds={l}\n"
    out += '.amdgcn_target "amdgcn-amd-amdhsa--gfx950"\n.text\n'
    out += a.finish()
    out += '.section .rodata,"a"\n'
    for n, nv, acc in kernels:
        out += ".p2align 6\n" + descriptor(n, nv, acc)
    print("nops added", a.nops_added, file=sys.stderr)
    return out


if __name__ == "__main__":
    dst = f"cdna_kernels/{NAME}.s"
    for arg in sys.argv[1:]:
        if "=" in arg:
            k, v = arg.split("=")
            OPT[k] = int(v)
        else:
            dst = arg
    open(dst, "w").write(build())
```
